```python
import torch

def _softmax(x, axis=-1):
    return torch.softmax(x, dim=axis)

def _gelu(x):
    return torch.nn.functional.gelu(x, approximate='tanh')

def _silu(x):
    return torch.nn.functional.silu(x)

def _sigmoid(x):
    return torch.sigmoid(x)

def _layernorm(x, axis=-1, eps=1e-05):
    m = x.mean(dim=axis, keepdim=True)
    v = x.var(dim=axis, keepdim=True, unbiased=False)
    return (x - m) / torch.sqrt(v + eps)

def _scatter_add(tgt, idx, src, axis=0):
    return tgt.clone().index_add_(axis, idx, src)

def _segment_sum(src, seg, n):
    out = torch.zeros((n,) + src.shape[1:], dtype=src.dtype)
    return out.index_add_(0, seg, src)

def _pad(x, pw):
    flat = tuple((v for pair in reversed(pw) for v in pair))
    return torch.nn.functional.pad(x, flat)
kernel_name = 'standalone__tree_speculative_verify_tree_attention_over_candidate_token_tree__decode'

def setup_inputs():

    _w = lambda a: (lambda t: t.to(torch.bfloat16) if t.is_floating_point() else t)(torch.as_tensor(a))
    B, Hq, Hkv, T, C, D = (1, 32, 32, 1, 4096, 128)
    tree_mask = torch.zeros((B, T, T), dtype=float)
    for b in range(B):
        parent = torch.zeros(T, dtype=torch.int64)
        for i in range(1, T):
            parent[i] = int(torch.randint(0, i, (1,)).item())
        for i in range(T):
            j = i
            tree_mask[b, i, j] = 1.0
            while j > 0:
                j = parent[j]
                tree_mask[b, i, j] = 1.0
    return {'q': _w((lambda *s: torch.randn(*s, dtype=torch.bfloat16) * 0.8)(B, Hq, T, D)), 'k_cache': _w((lambda *s: torch.randn(*s, dtype=torch.bfloat16) * 0.8)(B, Hkv, C, D)), 'v_cache': _w((lambda *s: torch.randn(*s, dtype=torch.bfloat16) * 0.05)(B, Hkv, C, D)), 'k_tree': _w((lambda *s: torch.randn(*s, dtype=torch.bfloat16) * 0.8)(B, Hkv, T, D)), 'v_tree': _w((lambda *s: torch.randn(*s, dtype=torch.bfloat16) * 0.05)(B, Hkv, T, D)), 'tree_mask': _w(tree_mask)}

def reference(q, k_cache, v_cache, k_tree, v_tree, tree_mask):
    B, Hq, T, D = q.shape
    Hkv, C = (k_cache.shape[1], k_cache.shape[2])
    rep = Hq // Hkv
    kc = (lambda x, n, axis: torch.repeat_interleave(x, n, dim=axis))(k_cache, rep, axis=1)
    vc = (lambda x, n, axis: torch.repeat_interleave(x, n, dim=axis))(v_cache, rep, axis=1)
    kt = (lambda x, n, axis: torch.repeat_interleave(x, n, dim=axis))(k_tree, rep, axis=1)
    vt = (lambda x, n, axis: torch.repeat_interleave(x, n, dim=axis))(v_tree, rep, axis=1)
    k = torch.concatenate([kc, kt], axis=2)
    v = torch.concatenate([vc, vt], axis=2)
    scale = D ** (-0.5)
    scores = torch.einsum('bhqd,bhkd->bhqk', q, k) * scale
    ctx_mask = torch.ones((B, 1, T, C), dtype=scores.dtype)
    tm = tree_mask[:, None, :, :].clone()
    full_mask = torch.concatenate([ctx_mask, tm], axis=-1)
    scores = scores + (1.0 - full_mask) * -1000000000.0
    p = _softmax(scores, axis=-1)
    return torch.einsum('bhqk,bhkd->bhqd', p, v)
```

```python
import sys, argparse

NAME = "standalone__tree_speculative_verify_tree_attention_over_candidate_token_tree__decode"
HDR = open("cdna_kernels/%s.s.ref" % NAME).read().split("; Override")[0]

def gen(NW=16, KW=32, nt=True, kv_barrier=False, headmajor=True, dbgstamp=False):
    SPLITS = 4096 // (NW * KW)
    GRID = 32 * SPLITS
    NG = KW // 16
    L = []
    A = L.append
    NT = " nt" if nt else ""
    OSTR = 512
    LDS_O = 0
    LDS_L = NW * OSTR
    LDS_M = LDS_L + 64
    LDS_SZ = LDS_M + 64
    vQ = 8
    vK = 24
    vV = vK + NG * 16
    vS = vV + NG * 16
    vO = vS + NG * 4
    vM = vO + 4
    vA = vM + 4
    vT = vA + 8
    NV = vT + 12
    vKo, vVo, vQo, vLn, vTq, vTk, vTv = 1, 2, 3, 4, 5, 6, 7
    nadd = (NG + 1) // 2
    vKo_x = [vKo] + [NV + i for i in range(nadd - 1)]
    vVo_x = [vVo] + [NV + nadd - 1 + i for i in range(nadd - 1)]
    NV += 2 * (nadd - 1)
    A(HDR.rstrip())
    A(f"; @launch grid=({GRID},1,1) block=({NW*64},1,1) lds={LDS_SZ}")
    A('.amdgcn_target "amdgcn-amd-amdhsa--gfx950"')
    A(".text")
    A(f".globl {NAME}_kernel")
    A(".p2align 8")
    A(f".type {NAME}_kernel,@function")
    A(f"{NAME}_kernel:")
    A("  s_load_dwordx16 s[4:19], s[0:1], 0")
    A("  s_load_dwordx2 s[20:21], s[0:1], 64")
    A(f"  s_cmp_ge_u32 s2, {GRID}")
    A("  s_cbranch_scc1 L_end")
    lg = SPLITS.bit_length() - 1
    if headmajor:
        A(f"  s_lshr_b32 s22, s2, {lg}        ; head")
        A(f"  s_and_b32 s23, s2, {SPLITS-1}      ; split")
    else:
        A(f"  s_and_b32 s22, s2, 31        ; head")
        A(f"  s_lshr_b32 s23, s2, 5      ; split")
    A(f"  s_lshl_b32 s24, s22, 20")
    A(f"  s_mul_i32 s25, s23, {NW*KW*256}")
    A(f"  s_add_u32 s24, s24, s25")
    A(f"  s_add_u32 s24, s24, 4096")
    A(f"  s_lshl_b32 s25, s22, 8")
    A(f"  v_lshrrev_b32 v{vT}, 6, v0")
    A(f"  v_and_b32 v{vT+1}, 15, v0         ; n")
    A(f"  v_bfe_u32 v{vT+2}, v0, 4, 2       ; g")
    A(f"  v_mul_u32_u24 v{vT+3}, {KW*256}, v{vT}")
    A(f"  v_add_u32 v{vT+3}, s24, v{vT+3}")
    A(f"  v_lshl_add_u32 v{vKo}, v{vT+1}, 8, v{vT+3}")
    A(f"  v_lshl_add_u32 v{vKo}, v{vT+2}, 4, v{vKo}")
    A(f"  v_lshl_add_u32 v{vVo}, v{vT+2}, 10, v{vT+3}")
    A(f"  v_lshl_add_u32 v{vVo}, v{vT+1}, 4, v{vVo}")
    A(f"  v_lshlrev_b32 v{vQo}, 4, v{vT+2}")
    A(f"  v_add_u32 v{vQo}, s25, v{vQo}")
    for i in range(1, nadd):
        A(f"  v_add_u32 v{vKo_x[i]}, {8192*i}, v{vKo}")
        A(f"  v_add_u32 v{vVo_x[i]}, {8192*i}, v{vVo}")
    A(f"  v_and_b32 v{vLn}, 63, v0          ; lane")
    A(f"  v_readfirstlane_b32 s26, v{vT}")
    A("  s_waitcnt lgkmcnt(0)")
    nload = 0
    for s in range(4):
        A(f"  global_load_dwordx4 v[{vQ+4*s}:{vQ+4*s+3}], v{vQo}, s[4:5] offset:{64*s}")
        nload += 1
    A(f"  v_lshl_add_u32 v{vT+6}, v{vLn}, 2, s25")
    A(f"  v_mov_b32 v{vT+7}, 0")
    A(f"  global_load_dword v{vTq}, v{vT+6}, s[4:5]")
    A(f"  global_load_dword v{vTk}, v{vT+6}, s[10:11]")
    A(f"  global_load_dword v{vTv}, v{vT+6}, s[12:13]")
    A(f"  global_load_ushort v{vT+8}, v{vT+7}, s[14:15]")
    for q in range(NG):
        for s in range(4):
            r = vK + 16*q + 4*s
            off = (q % 2) * 4096 - 4096 + 64*s
            A(f"  global_load_dwordx4 v[{r}:{r+3}], v{vKo_x[q//2]}, s[6:7] offset:{off}{NT}")
            nload += 1
    A(f"  v_mov_b32 v{vT+4}, {LDS_M}")
    A(f"  v_mov_b32 v{vT+5}, 0xff800000")
    A(f"  ds_write_b32 v{vT+4}, v{vT+5}")
    A("  s_waitcnt lgkmcnt(0)")
    A("  s_barrier")
    for q in range(NG):
        for r_ in range(4):
            r = vV + 16*q + 4*r_
            off = (q % 2) * 4096 - 4096 + 256*r_
            A(f"  global_load_dwordx4 v[{r}:{r+3}], v{vVo_x[q//2]}, s[8:9] offset:{off}{NT}")
            nload += 1
    NVL = 4*NG
    A(f"  v_and_b32 v{vT+4}, 1, v{vT+1}")
    A(f"  v_lshlrev_b32 v{vT+4}, 4, v{vT+4}")
    A(f"  v_mov_b32 v{vT+5}, 0xffff")
    A(f"  v_lshlrev_b32 v{vT+4}, v{vT+4}, v{vT+5}     ; 0xffff << (16*(n&1))")
    A(f"  v_lshrrev_b32 v{vT+5}, 1, v{vT+1}          ; n>>1")
    for r in range(4):
        A(f"  v_cmp_eq_u32 vcc, {r}, v{vT+5}")
        A("  s_nop 1")
        A(f"  v_cndmask_b32 v{vM+r}, 0, v{vT+4}, vcc")
    for r in range(4):
        A(f"  v_mov_b32 v{vO+r}, 0")
    A("  s_mov_b32 s27, 0x3e0293ee   ; log2(e)/sqrt(128)")
    for q in range(NG):
        A(f"  s_waitcnt vmcnt({NVL + 4*(NG-1-q)})")
        for s in range(4):
            c = "0" if s == 0 else f"v[{vS+4*q}:{vS+4*q+3}]"
            A(f"  v_mfma_f32_16x16x32_bf16 v[{vS+4*q}:{vS+4*q+3}], v[{vK+16*q+4*s}:{vK+16*q+4*s+3}], v[{vQ+4*s}:{vQ+4*s+3}], {c}")
    A("  s_nop 7")
    regs = [vS + i for i in range(4*NG)]
    A(f"  v_max3_f32 v{vT+4}, v{regs[0]}, v{regs[1]}, v{regs[2]}")
    i = 3
    while i < len(regs):
        if i + 1 < len(regs):
            A(f"  v_max3_f32 v{vT+4}, v{vT+4}, v{regs[i]}, v{regs[i+1]}")
            i += 2
        else:
            A(f"  v_max_f32 v{vT+4}, v{vT+4}, v{regs[i]}")
            i += 1
    A(f"  v_mul_f32 v{vT+4}, s27, v{vT+4}")
    A(f"  v_mov_b32 v{vT+5}, {LDS_M}")
    A("  s_mov_b32 exec_lo, 0x00010001")
    A("  s_mov_b32 exec_hi, 0x00010001")
    A(f"  ds_max_f32 v{vT+5}, v{vT+4}")
    A("  s_mov_b64 exec, -1")
    A("  s_cmp_lg_u32 s26, 0")
    A("  s_cbranch_scc1 L_notree")
    A(f"  v_dot2_f32_bf16 v{vTq}, v{vTq}, v{vTk}, 0")
    A("  s_nop 2")
    for sh in (8, 4, 2, 1):
        A(f"  v_add_f32_dpp v{vTq}, v{vTq}, v{vTq} row_ror:{sh} row_mask:0xf bank_mask:0xf")
        A("  s_nop 1")
    A(f"  v_readlane_b32 s28, v{vTq}, 0")
    A(f"  v_readlane_b32 s29, v{vTq}, 16")
    A(f"  v_readlane_b32 s30, v{vTq}, 32")
    A(f"  v_readlane_b32 s31, v{vTq}, 48")
    A(f"  v_mov_b32 v{vTq}, s28")
    A(f"  v_add_f32 v{vTq}, s29, v{vTq}")
    A(f"  v_add_f32 v{vTq}, s30, v{vTq}")
    A(f"  v_add_f32 v{vTq}, s31, v{vTq}")
    A(f"  v_mul_f32 v{vTq}, s27, v{vTq}")
    A(f"  v_lshlrev_b32 v{vT+8}, 16, v{vT+8}")
    A(f"  v_sub_f32 v{vT+8}, 1.0, v{vT+8}")
    A(f"  v_mul_f32 v{vT+8}, 0xceabfb8f, v{vT+8}   ; -1e9*log2(e)")
    A(f"  v_add_f32 v{vTq}, v{vTq}, v{vT+8}")
    A(f"  v_mov_b32 v{vT+8}, 0xff800000")
    A("  s_cmp_eq_u32 s23, 0")
    A("  s_cselect_b64 vcc, -1, 0")
    A(f"  v_cndmask_b32 v{vTq}, v{vT+8}, v{vTq}, vcc")
    A("  s_mov_b64 exec, 1")
    A(f"  ds_max_f32 v{vT+5}, v{vTq}")
    A("  s_mov_b64 exec, -1")
    A("L_notree:")
    A("  s_waitcnt lgkmcnt(0)")
    A("  s_barrier")
    A(f"  ds_read_b32 v{vT+4}, v{vT+5}       ; M (scaled)")
    A("  s_waitcnt lgkmcnt(0)")
    for i in range(4*NG):
        A(f"  v_fma_f32 v{vS+i}, v{vS+i}, s27, -v{vT+4}")
    for i in range(4*NG):
        A(f"  v_exp_f32 v{vS+i}, v{vS+i}")
    A("  s_nop 0")
    A(f"  v_add_f32 v{vT+6}, v{vS}, v{vS+1}")
    for i in range(2, 4*NG):
        A(f"  v_add_f32 v{vT+6}, v{vT+6}, v{vS+i}")
    for i in range(4*NG):
        A(f"  v_cvt_pk_bf16_f32 v{vS+i}, v{vS+i}, v{vS+i}")
    A(f"  v_mov_b32 v{vT+7}, v{vT+6}")
    A("  s_nop 1")
    A(f"  v_permlane32_swap_b32 v{vT+6}, v{vT+7}")
    A("  s_nop 1")
    A(f"  v_add_f32 v{vT+6}, v{vT+6}, v{vT+7}")
    A(f"  v_mov_b32 v{vT+7}, v{vT+6}")
    A("  s_nop 1")
    A(f"  v_permlane16_swap_b32 v{vT+6}, v{vT+7}")
    A("  s_nop 1")
    A(f"  v_add_f32 v{vT+6}, v{vT+6}, v{vT+7}")
    A(f"  v_lshlrev_b32 v{vT+7}, 2, v{vT}")
    A("  s_mov_b64 exec, 1")
    A(f"  ds_write_b32 v{vT+7}, v{vT+6} offset:{LDS_L}")
    A("  s_mov_b64 exec, -1")
    for i in range(4*NG):
        a = vA + 4*(i % 2)
        for r in range(4):
            A(f"  v_and_b32 v{a+r}, v{vS+i}, v{vM+r}")
        A(f"  s_waitcnt vmcnt({4*NG-1-i})")
        A("  s_nop 0")
        A(f"  v_mfma_f32_16x16x32_bf16 v[{vO}:{vO+3}], v[{a}:{a+3}], v[{vV+4*i}:{vV+4*i+3}], v[{vO}:{vO+3}]")
    A(f"  v_lshlrev_b32 v{vT+7}, 5, v{vT+1}")
    A(f"  v_lshl_add_u32 v{vT+7}, v{vT+2}, 4, v{vT+7}")
    A(f"  v_lshl_add_u32 v{vT+7}, v{vT}, 9, v{vT+7}")
    A("  s_mov_b32 exec_hi, 0")
    A("  s_nop 4")
    A(f"  ds_write_b128 v{vT+7}, v[{vO}:{vO+3}]")
    A("  s_mov_b64 exec, -1")
    A("  s_waitcnt lgkmcnt(0)")
    A("  s_barrier")
    A("  s_cmp_lg_u32 s26, 0")
    A("  s_cbranch_scc1 L_end")
    A(f"  v_lshlrev_b32 v{vT+7}, 3, v{vLn}")
    R = vK
    for w in range(NW):
        A(f"  ds_read_b64 v[{R+2*w}:{R+2*w+1}], v{vT+7} offset:{w*OSTR}")
    RL = vV
    A(f"  v_mov_b32 v{vT+8}, {LDS_L}")
    for i in range(NW // 4):
        A(f"  ds_read_b128 v[{RL+4*i}:{RL+4*i+3}], v{vT+8} offset:{16*i}")
    A(f"  v_sub_f32 v{vTq}, v{vTq}, v{vT+4}")
    A(f"  v_exp_f32 v{vTq}, v{vTq}")
    A(f"  v_lshlrev_b32 v{vT+9}, 16, v{vTv}")
    A(f"  v_and_b32 v{vT+10}, 0xffff0000, v{vTv}")
    A(f"  v_mul_f32 v{vT+9}, v{vTq}, v{vT+9}")
    A(f"  v_mul_f32 v{vT+10}, v{vTq}, v{vT+10}")
    A("  s_waitcnt lgkmcnt(0)")
    for w in range(NW):
        A(f"  v_add_f32 v{vT+9}, v{vT+9}, v{R+2*w}")
        A(f"  v_add_f32 v{vT+10}, v{vT+10}, v{R+2*w+1}")
        A(f"  v_add_f32 v{vTq}, v{vTq}, v{RL+w}")
    A(f"  s_mul_i32 s28, s22, {SPLITS}")
    A("  s_add_u32 s29, s28, s23")
    A("  s_lshl_b32 s30, s29, 9")
    A(f"  v_add_u32 v{vT+8}, s30, v{vT+7}")
    A(f"  v_mov_b32 v{vA}, v{vT+9}")
    A(f"  v_mov_b32 v{vA+1}, v{vT+10}")
    A(f"  global_store_dwordx2 v{vT+8}, v[{vA}:{vA+1}], s[20:21] sc1")
    A("  s_lshl_b32 s30, s29, 3")
    A("  s_add_u32 s30, s30, 0x100000")
    A(f"  v_mov_b32 v{vT+8}, s30")
    A(f"  v_mov_b32 v{vA+2}, v{vT+4}")
    A(f"  v_mov_b32 v{vA+3}, v{vTq}")
    A("  s_mov_b64 exec, 1")
    A(f"  global_store_dwordx2 v{vT+8}, v[{vA+2}:{vA+3}], s[20:21] sc1")
    A("  s_lshl_b32 s30, s22, 3")
    A(f"  v_mov_b32 v{vT+8}, s30")
    A(f"  v_mov_b32 v{vT+6}, 1")
    A("  s_waitcnt vmcnt(0)")
    A(f"  global_atomic_add v{vT+6}, v{vT+8}, v{vT+6}, s[18:19] sc0")
    A("  s_waitcnt vmcnt(0)")
    A(f"  v_readfirstlane_b32 s30, v{vT+6}")
    A("  s_mov_b64 exec, -1")
    A(f"  s_cmp_lg_u32 s30, {SPLITS-1}")
    A("  s_cbranch_scc1 L_end")
    A("  s_lshl_b32 s30, s28, 9")
    A(f"  v_add_u32 v{vT+8}, s30, v{vT+7}")
    A("  s_lshl_b32 s30, s28, 3")
    A("  s_add_u32 s30, s30, 0x100000")
    A(f"  v_mov_b32 v{vT+6}, s30")
    for i in range(SPLITS // 2):
        A(f"  global_load_dwordx4 v[{RL+4*i}:{RL+4*i+3}], v{vT+6}, s[20:21] offset:{16*i} sc1")
    for j in range(SPLITS):
        if j * 512 > 4095:
            if (j * 512) % 4096 == 0:
                A(f"  v_add_u32 v{vT+8}, 4096, v{vT+8}")
        A(f"  global_load_dwordx2 v[{R+2*j}:{R+2*j+1}], v{vT+8}, s[20:21] offset:{(j*512) % 4096} sc1")
    A(f"  s_waitcnt vmcnt({SPLITS})")
    A(f"  v_max_f32 v{vT+4}, v{RL}, v{RL+2}")
    for j in range(2, SPLITS, 2):
        A(f"  v_max3_f32 v{vT+4}, v{vT+4}, v{RL+2*j}, v{RL+2*j+2}")
    for j in range(SPLITS):
        A(f"  v_sub_f32 v{RL+2*j}, v{RL+2*j}, v{vT+4}")
    for j in range(SPLITS):
        A(f"  v_exp_f32 v{RL+2*j}, v{RL+2*j}")
    A("  s_nop 0")
    A(f"  v_mul_f32 v{vT+6}, v{RL}, v{RL+1}")
    for j in range(1, SPLITS):
        A(f"  v_fmac_f32 v{vT+6}, v{RL+2*j}, v{RL+2*j+1}")
    A(f"  v_rcp_f32 v{vT+6}, v{vT+6}")
    A("  s_waitcnt vmcnt(0)")
    A(f"  v_mul_f32 v{vT+9}, v{RL}, v{R}")
    A(f"  v_mul_f32 v{vT+10}, v{RL}, v{R+1}")
    for j in range(1, SPLITS):
        A(f"  v_fmac_f32 v{vT+9}, v{RL+2*j}, v{R+2*j}")
        A(f"  v_fmac_f32 v{vT+10}, v{RL+2*j}, v{R+2*j+1}")
    A(f"  v_mul_f32 v{vT+9}, v{vT+9}, v{vT+6}")
    A(f"  v_mul_f32 v{vT+10}, v{vT+10}, v{vT+6}")
    A(f"  v_cvt_pk_bf16_f32 v{vT+9}, v{vT+9}, v{vT+10}")
    A(f"  v_lshl_add_u32 v{vT+8}, v{vLn}, 2, s25")
    A(f"  global_store_dword v{vT+8}, v{vT+9}, s[16:17]")
    A("L_end:")
    A("  s_endpgm")
    A('.section .rodata,"a"')
    A(".p2align 6")
    A(f".amdhsa_kernel {NAME}_kernel")
    nv = (NV + 3) // 4 * 4
    A(f"  .amdhsa_next_free_vgpr {nv}")
    A("  .amdhsa_next_free_sgpr 40")
    A(f"  .amdhsa_accum_offset {nv}")
    A("  .amdhsa_group_segment_fixed_size 0")
    A("  .amdhsa_kernarg_size 72")
    A("  .amdhsa_user_sgpr_count 2")
    A("  .amdhsa_user_sgpr_kernarg_segment_ptr 1")
    A("  .amdhsa_system_sgpr_workgroup_id_x 1")
    A(".end_amdhsa_kernel")
    return "\n".join(L) + "\n"

if __name__ == "__main__":
    ap = argparse.ArgumentParser()
    ap.add_argument("-o", default="cdna_kernels/%s.s" % NAME)
    ap.add_argument("--nw", type=int, default=16)
    ap.add_argument("--kw", type=int, default=32)
    ap.add_argument("--nont", action="store_true")
    ap.add_argument("--splitmajor", action="store_true")
    a = ap.parse_args()
    open(a.o, "w").write(gen(NW=a.nw, KW=a.kw, nt=not a.nont, headmajor=not a.splitmajor))
```

```python
import re
TRANS = ("v_exp_f32", "v_log_f32", "v_rcp_f32", "v_rsq_f32", "v_sqrt_f32")
def regs(tok):
    tok = tok.strip().lstrip("-").strip("|")
    m = re.fullmatch(r"([vsa])\[(\d+):(\d+)\]", tok)
    if m: return [f"{m.group(1)}{i}" for i in range(int(m.group(2)), int(m.group(3)) + 1)]
    if re.fullmatch(r"[vsa]\d+", tok): return [tok]
    if tok == "vcc": return ["vcc"]
    if tok in ("vcc_lo", "vcc_hi"): return ["vcc"]
    return []
class Asm:
    def __init__(self):
        self.L = []; self.pos = 0
        self.vw = {}
        self.sw = {}
        self.cr = {}
        self.st = {}
        self.lastD = {}
    def raw(self, t): self.L.append(t)
    def label(self, t): self.L.append(t + ":")
    def nop(self, n):
        while n > 0:
            k = min(n, 16); self.L.append(f"  s_nop {k-1}"); self.pos += k; n -= k
    def flush(self, n=8):
        last = max([p for p, _ in self.vw.values()] + list(self.sw.values()) + [-100])
        need = n - (self.pos - last - 1)
        if need > 0: self.nop(need)
    def __call__(self, text):
        body = text.split(";")[0].strip()
        op, _, rest = body.partition(" ")
        mods = ""
        rest = re.sub(r"\b(op_sel|op_sel_hi|neg_lo|neg_hi|quad_perm):\[[^\]]*\]", "", rest)
        rest = re.sub(r"hwreg\([^)]*\)", "0", rest)
        toks = [t.strip() for t in rest.split(",")] if rest.strip() else []
        if toks:
            last = toks[-1].split()
            if last:
                toks[-1] = last[0]; mods = " ".join(last[1:])
        need = 0
        def req(p, n):
            nonlocal need
            need = max(need, n - (self.pos - p - 1))
        isv = op.startswith("v_")
        mf = op.startswith("v_mfma")
        vm = op.startswith(("global_", "buffer_", "flat_"))
        ds = op.startswith("ds_")
        dst, src = [], []
        if isv:
            if op.startswith("v_cmp"):
                dst = regs(toks[0]); src = sum((regs(t) for t in toks[1:]), [])
            elif op.startswith("v_permlane"):
                dst = regs(toks[0]) + regs(toks[1]); src = list(dst)
            else:
                dst = regs(toks[0]); src = sum((regs(t) for t in toks[1:]), [])
                if op.startswith(("v_fmac", "v_mac")) or "dpp" in op: src += dst
                if op.startswith("v_cndmask") and len(toks) == 3: src.append("vcc")
        elif vm:
            if "load" in op or ("atomic" in op and "sc0" in mods):
                dst = regs(toks[0]); src = sum((regs(t) for t in toks[1:]), [])
            else:
                src = sum((regs(t) for t in toks), [])
        elif ds:
            if "read" in op or "rtn" in op or "permute" in op:
                dst = regs(toks[0]); src = sum((regs(t) for t in toks[1:]), [])
            else:
                src = sum((regs(t) for t in toks), [])
        dpp = "dpp" in op
        trans = op.replace("_e32", "").replace("_e64", "") in TRANS
        dot = op.startswith("v_dot")
        rl = op.startswith(("v_readlane", "v_readfirstlane"))
        for r in src:
            if r[0] in "va" and r != "vcc" and r in self.vw:
                p, k = self.vw[r]
                if k == "mfma":
                    if mf:
                        c = regs(toks[3])
                        if r in c and r not in regs(toks[1]) + regs(toks[2]):
                            req(p, 0 if self.lastD.get(p) == tuple(c) else 6)
                        else: req(p, 8)
                    else: req(p, 8)
                else:
                    if k == "dot" and isv: req(p, 3)
                    if mf: req(p, 2)
                    if dpp or op.startswith("v_permlane"): req(p, 2)
                    if rl: req(p, 1)
                    if k == "trans" and isv and not trans: req(p, 1)
            if (r[0] == "s" or r == "vcc") and r in self.sw:
                p = self.sw[r]
                if vm: req(p, 5)
                elif rl and r in regs(toks[-1]) and op.startswith("v_readlane"): req(p, 4)
                elif isv: req(p, 2)
        for r in dst:
            if r in self.vw and self.vw[r][1] == "mfma" and not mf: req(self.vw[r][0], 8)
            if r in self.vw and self.vw[r][1] == "dot" and isv: req(self.vw[r][0], 3)
            if isv and not mf and r in self.cr: req(self.cr[r], 3)
            if r in self.st: req(self.st[r], 2)
        if need > 0: self.nop(need)
        self.L.append("  " + text)
        me = self.pos
        if op == "s_nop": self.pos += int(toks[0]) + 1
        else: self.pos += 1
        if isv:
            for r in dst:
                if r[0] in "va" and r != "vcc":
                    self.vw[r] = (me, "mfma" if mf else "trans" if trans else "dot" if dot else "valu")
                else: self.sw[r] = me
            if mf:
                self.lastD[me] = tuple(dst)
                for r in regs(toks[3]): self.cr[r] = me
        else:
            for r in dst: self.vw.pop(r, None)
            if op.startswith("s_") and toks:
                for r in regs(toks[0]):
                    if not op.startswith(("s_cmp", "s_bitcmp", "s_cbranch", "s_waitcnt")): self.sw.pop(r, None)
        if vm and ("x3" in op or "x4" in op) and "store" in op:
            for r in regs(toks[1]): self.st[r] = me
    def text(self): return "\n".join(self.L) + "\n"
```

```python
import sys, argparse
from asmlib import Asm
NAME = "standalone__tree_speculative_verify_tree_attention_over_candidate_token_tree__decode"
HDR = open("cdna_kernels/%s.s.ref" % NAME).read().split("; Override")[0]

def gen(D=24, NB=8, amap="zm", stamp=False, safe=False, forceslow=False, outmod="", kvbar=False,
        spec=True, comb=0, prio=0, depth=2, PA=28, annmod='', sat=True):
    NS_W = 4
    NL = 32
    NSL = min(2 * NL, D + 2)
    A = Asm()
    def STAMP(i):
        if stamp: A(f"s_memrealtime s[{64+2*i}:{65+2*i}]")
    def GUARD():
        if safe:
            A("s_add_u32 s63, s63, 1"); A("s_cmp_gt_u32 s63, 0x40000"); A("s_cbranch_scc1 L_end")
    def LG(n): return 0 if stamp else n
    C_ML, C_O, FAC, REC, OP = 0, 8, 16, 256, 256 + 2048
    LDS_SZ = OP + 2048
    C_OFF = 1 << 20
    vK = 1; vV = 5
    vLn = 9; vT = 10
    vB = 16
    vDt = 32
    vX = 40
    vMx = 42
    vM = 44
    vA = 48
    vO = 56
    vOne, vZero = 60, 61
    vRecA, vOpW, vOpR, vSl = 62, 63, 64, 65
    vAnn = 66
    vQ = 68
    vR = 72
    NV = vR + 4 * NSL
    A.raw(HDR.rstrip())
    A.raw(f"; @launch grid=(256,1,1) block=(320,1,1) lds={LDS_SZ}")
    A.raw('.amdgcn_target "amdgcn-amd-amdhsa--gfx950"'); A.raw(".text"); A.raw(f".globl {NAME}_kernel")
    A.raw(".p2align 8"); A.raw(f".type {NAME}_kernel,@function"); A.label(f"{NAME}_kernel")
    A("s_load_dwordx8 s[4:11], s[0:1], 0      ; q k v k_tree")
    STAMP(0)
    if safe: A("s_mov_b32 s63, 0")
    A(f"v_lshrrev_b32 v{vT}, 6, v0")
    A("s_cmp_ge_u32 s2, 256")
    A("s_cbranch_scc1 L_end")
    A(f"v_readfirstlane_b32 s26, v{vT}         ; wave")
    A(f"v_and_b32 v{vLn}, 63, v0")
    if amap == "zm":
        A("s_and_b32 s22, s2, 7"); A("s_lshl_b32 s22, s22, 5"); A("s_lshr_b32 s23, s2, 3"); A("s_or_b32 s22, s22, s23")
    elif amap == "xm":
        A("s_and_b32 s22, s2, 7"); A("s_lshl_b32 s22, s22, 2"); A("s_bfe_u32 s23, s2, 0x20003"); A("s_or_b32 s22, s22, s23")
        A("s_lshl_b32 s22, s22, 3"); A("s_lshr_b32 s23, s2, 5"); A("s_or_b32 s22, s22, s23")
    elif amap == "hm":
        A("s_mov_b32 s22, s2")
    A(f"v_bfe_i32 v{vT+1}, v0, 2, 1")
    A(f"v_lshlrev_b32 v{vT+2}, 2, v{vLn}")
    A(f"ds_write_b32 v{vT+2}, v{vT+1}")
    A("s_lshr_b32 s25, s22, 3                 ; head")
    A(f"s_cmp_eq_u32 s26, {NS_W}")
    A("s_cbranch_scc1 L_H")
    A("s_lshl_b32 s24, s22, 17")
    A("s_lshl_b32 s28, s26, 15")
    A("s_add_u32 s24, s24, s28")
    A("s_add_u32 s24, s24, 4096")
    A(f"v_and_b32 v{vT}, 3, v0")
    A(f"v_lshl_add_u32 v{vK}, v{vT}, 4, s24")
    A(f"v_bfe_u32 v{vT+1}, v0, 2, 2")
    A(f"v_lshl_add_u32 v{vK}, v{vT+1}, 8, v{vK}")
    A(f"v_bfe_u32 v{vT+1}, v0, 4, 2")
    A(f"v_lshl_add_u32 v{vK}, v{vT+1}, 6, v{vK}")
    A("s_lshl_b32 s28, s25, 8")
    A(f"v_lshrrev_b32 v{vT+2}, 2, v{vLn}")
    A(f"v_lshl_add_u32 v{vT+2}, v{vT+2}, 4, s28")
    for i in range(1, 4): A(f"v_add_u32 v{vK+i}, {8192*i}, v{vK}")
    A("s_waitcnt lgkmcnt(0)")
    STAMP(1)
    if prio: A(f"s_setprio {prio}")
    def slot(k): return vR + 4 * (k % NSL)
    def load(k):
        r = slot(k)
        if k < NL: base, va, i = "s[6:7]", vK, k
        else: base, va, i = "s[8:9]", vV, k - NL
        A(f"global_load_dwordx4 v[{r}:{r+3}], v{va + i//8}, {base} offset:{(i%8)*1024-4096} nt")
    pend = []
    def qk(k):
        t, c = k // 4, k % 4
        d = vDt + 4 * (t % 2)
        cc = "0" if c == 0 else f"v[{d}:{d+3}]"
        A(f"v_mfma_f32_16x16x32_bf16 v[{d}:{d+3}], v[{slot(k)}:{slot(k)+3}], v[{vB+4*c}:{vB+4*c+3}], {cc}")
    def red(t, i):
        h, u = t // 4, t % 4
        d = vDt + 4 * (t % 2)
        b = [x for x in range(4) if x != u][i]
        s1 = f"v{d+u}" if i == 0 else f"v{vX+h}"
        A(f"v_add_f32_dpp v{vX+h}, v{d+b}, {s1} row_ror:{(4*(u-b))%16} row_mask:0xf bank_mask:{hex(1<<u)}")
    def abuild(j):
        a = vA + 4 * (j % 2)
        for r in range(4):
            A(f"v_and_b32_dpp v{a+r}, v{vX + j//16}, v{vM+r} row_newbcast:{j%16} row_mask:0xf bank_mask:0xf")
    def pv(j):
        a = vA + 4 * (j % 2); r = slot(NL + j)
        cc = "0" if j == 0 else f"v[{vO}:{vO+3}]"
        A(f"v_mfma_f32_16x16x32_bf16 v[{vO}:{vO+3}], v[{a}:{a+3}], v[{r}:{r+3}], {cc}")
    def setup_after_first():
        A("s_load_dwordx4 s[16:19], s[0:1], 56")
        A(f"v_lshl_add_u32 v{vV}, v{vLn}, 4, s24")
        for i in range(1, 4): A(f"v_add_u32 v{vV+i}, {8192*i}, v{vV}")
        A(f"v_and_b32 v{vT+1}, 15, v0              ; n")
        A(f"v_and_b32 v{vT+3}, 1, v0")
        A(f"v_lshlrev_b32 v{vT+3}, 4, v{vT+3}")
        A(f"v_mov_b32 v{vT+4}, 0xffff")
        A(f"v_lshlrev_b32 v{vT+3}, v{vT+3}, v{vT+4}    ; 0xffff << 16*(n&1)")
        A(f"v_lshrrev_b32 v{vT+4}, 1, v{vT+1}")
        for r in range(4):
            A(f"v_cmp_eq_u32 s[{40+2*r}:{41+2*r}], {r}, v{vT+4}")
        for c in range(4):
            A(f"v_cmp_eq_u32 s[{48+2*c}:{49+2*c}], {c}, v{vT}")
        for r in range(4):
            A(f"v_cndmask_b32 v{vM+r}, 0, v{vT+3}, s[{40+2*r}:{41+2*r}]")
        A(f"v_mov_b32 v{vOne}, 1")
        A(f"v_mov_b32 v{vZero}, 0")
        A("s_lshl_b32 s28, s26, 9")
        A(f"v_lshlrev_b32 v{vOpR}, 3, v{vLn}")
        A(f"v_add_u32 v{vRecA}, s28, v{vOpR}")
        A(f"v_bfe_u32 v{vT+3}, v0, 4, 1")
        A(f"v_lshlrev_b32 v{vT+3}, 4, v{vT+3}")
        A(f"v_lshl_add_u32 v{vT+3}, v{vT+1}, 5, v{vT+3}")
        A(f"v_add_u32 v{vOpW}, s28, v{vT+3}")
        A("s_lshl_b32 s28, s25, 13")
        A("s_and_b32 s29, s22, 7")
        A("s_lshl_b32 s30, s29, 9")
        A("s_add_u32 s28, s28, s30")
        A(f"v_add_u32 v{vSl}, s28, v{vOpR}")
        A("s_mov_b32 s31, 0x3e0293ee              ; log2(e)/sqrt(128)")
        A("s_lshl_b32 s28, s25, 2")
        A(f"v_mov_b32 v{vAnn}, s28")
    def bmask():
        for c in range(4):
            for r in range(4):
                A(f"v_cndmask_b32 v{vB+4*c+r}, 0, v{vQ+r}, s[{48+2*c}:{49+2*c}]")
    def softmax():
        m = vMx
        A(f"v_max_f32 v{m}, v{vX}, v{vX+1}")
        for sh in (8, 4, 2, 1):
            A(f"v_max_f32_dpp v{m}, v{m}, v{m} row_ror:{sh} row_mask:0xf bank_mask:0xf")
        A(f"v_mov_b32 v{vT}, v{m}")
        A(f"v_permlane16_swap_b32 v{vT}, v{m}")
        A(f"v_max_f32 v{m}, v{m}, v{vT}")
        A(f"v_mov_b32 v{vT}, v{m}")
        A(f"v_permlane32_swap_b32 v{vT}, v{m}")
        A(f"v_max_f32 v{m}, v{m}, v{vT}")
        A(f"v_mul_f32 v{m}, s31, v{m}")
        for h in range(2): A(f"v_fma_f32 v{vX+h}, v{vX+h}, s31, -v{m}")
        for h in range(2): A(f"v_exp_f32 v{vX+h}, v{vX+h}")
        A(f"v_add_f32 v{m+1}, v{vX}, v{vX+1}")
        for h in range(2): A(f"v_cvt_pk_bf16_f32 v{vX+h}, v{vX+h}, v{vX+h}")
        A(f"ds_write_b64 v{vRecA}, v[{m}:{m+1}] offset:{REC}")
        STAMP(4)
    def publish():
        A("s_mov_b64 exec, 1")
        A(f"ds_or_b32 v{vZero}, v{vAnn} offset:{C_ML+4}")
        A(f"ds_add_u32 v{vZero}, v{vOne} offset:{C_ML}")
        A("s_mov_b64 exec, -1")
    A(f"global_load_dwordx4 v[{vQ}:{vQ+3}], v{vT+2}, s[4:5]")
    issued = 0
    def consume(k, outstanding_after):
        if k < NL:
            if k == 0:
                A(f"s_waitcnt vmcnt({min(63, outstanding_after + 1)})   ; q")
                bmask()
            A(f"s_waitcnt vmcnt({outstanding_after})")
            if k == 0: STAMP(2)
            qk(k)
            if pend: pend.pop(0)()
            if k % 4 == 3:
                t = k // 4
                pend.append(lambda: None)
                for i in range(3): pend.append(lambda t=t, i=i: red(t, i))
            if k == NL - 1:
                while pend: pend.pop(0)()
                softmax()
                if PA < NL - 1: publish()
                abuild(0)
        else:
            j = k - NL
            if j + 1 < NL: abuild(j + 1)
            A(f"s_waitcnt vmcnt({outstanding_after})")
            pv(j)
            if k == PA + 1: publish()
    assert NB <= PA < 2 * NL - 2
    def after(k, last):
        return last - k + (1 if k <= PA <= last else 0) - (1 if False else 0)
    for k in range(2 * NL):
        if kvbar and k == NL: A("s_barrier")
        load(k)
        if k == PA:
            A("s_waitcnt lgkmcnt(0)")
            A(f"global_load_dword v{vAnn}, v{vAnn}, s[16:17] sc1")
        if k == NB - 1:
            setup_after_first()
            A("s_barrier")
        if k - D >= 0: consume(k - D, after(k - D, k))
    STAMP(3)
    for k in range(max(0, 2 * NL - D), 2 * NL):
        consume(k, after(k, 2 * NL - 1))
    STAMP(5)
    f = vB; o = vB + 4
    A("s_mov_b32 exec_hi, 0")
    A(f"ds_write_b128 v{vOpW}, v[{vO}:{vO+3}] offset:{OP}")
    A("s_mov_b32 exec_lo, 1")
    A(f"ds_add_rtn_u32 v{vT}, v{vZero}, v{vOne} offset:{C_O}")
    A("s_mov_b64 exec, -1")
    A.label("L_fac")
    A(f"ds_read_b128 v[{f}:{f+3}], v{vZero} offset:{FAC}")
    for w in range(4):
        A(f"ds_read_b64 v[{o+2*w}:{o+2*w+1}], v{vOpR} offset:{OP+512*w}")
    A(f"s_waitcnt lgkmcnt({LG(4)})")
    A(f"v_max_u32 v{vT+1}, v{f}, v{f+1}")
    A(f"v_max3_u32 v{vT+1}, v{f+2}, v{f+3}, v{vT+1}")
    A(f"v_readfirstlane_b32 s28, v{vT}")
    A(f"v_readfirstlane_b32 s29, v{vT+1}")
    A(f"s_waitcnt lgkmcnt({LG(3)})")
    A(f"v_pk_mul_f32 v[{o}:{o+1}], v[{o}:{o+1}], v[{f}:{f+1}] op_sel_hi:[1,0]")
    A("s_cmp_lg_u32 s28, 3")
    A("s_cbranch_scc1 L_fin")
    A(f"s_waitcnt lgkmcnt({LG(2)})")
    A(f"v_pk_fma_f32 v[{o}:{o+1}], v[{o+2}:{o+3}], v[{f}:{f+1}], v[{o}:{o+1}] op_sel:[0,1,0] op_sel_hi:[1,1,1]")
    A(f"s_waitcnt lgkmcnt({LG(1)})")
    A(f"v_pk_fma_f32 v[{o}:{o+1}], v[{o+4}:{o+5}], v[{f+2}:{f+3}], v[{o}:{o+1}] op_sel_hi:[1,0,1]")
    A("s_waitcnt lgkmcnt(0)")
    A(f"v_pk_fma_f32 v[{o}:{o+1}], v[{o+6}:{o+7}], v[{f+2}:{f+3}], v[{o}:{o+1}] op_sel:[0,1,0] op_sel_hi:[1,1,1]")
    A("s_cmp_lt_i32 s29, 0")
    A("s_cbranch_scc1 L_slow")
    A(f"v_min_u32 v{o}, -2, v{o}")
    A(f"v_min_u32 v{o+1}, -2, v{o+1}")
    A(f"global_store_dwordx2 v{vSl}, v[{o}:{o+1}], s[18:19]")
    if stamp:
        STAMP(6); A("s_branch L_fin")
    else:
        A("s_endpgm")
    A.label("L_slow")
    GUARD()
    A("s_cmp_eq_u32 s29, -1")
    A("s_cbranch_scc1 L_fac")
    A(f"v_sub_f32 v{o}, 0, v{o}")
    A(f"v_sub_f32 v{o+1}, 0, v{o+1}")
    A(f"v_min_u32 v{o}, -2, v{o}")
    A(f"v_min_u32 v{o+1}, -2, v{o+1}")
    A(f"v_add_u32 v{vSl}, {C_OFF}, v{vSl}")
    A(f"global_store_dwordx2 v{vSl}, v[{o}:{o+1}], s[18:19] sc1")
    A("s_and_b32 s29, s22, 7")
    A("s_lshl_b32 s29, 1, s29")
    A(f"v_mov_b32 v{vT}, s29")
    A("s_lshl_b32 s28, s25, 2")
    A(f"v_mov_b32 v{vT+1}, s28")
    A("s_waitcnt vmcnt(0)")
    A("s_mov_b64 exec, 1")
    A(f"global_atomic_or v{vT+1}, v{vT}, s[16:17] offset:128 sc1")
    STAMP(6)
    A("s_branch L_fin")
    h0 = 16
    A.label("L_H")
    A("s_load_dwordx4 s[12:15], s[0:1], 32")
    A("s_load_dwordx2 s[32:33], s[0:1], 48")
    A("s_load_dwordx4 s[16:19], s[0:1], 56")
    A("s_getreg_b32 s37, hwreg(HW_REG_XCC_ID)")
    A("s_and_b32 s37, s37, 15")
    A("s_add_u32 s37, s37, 1")
    A("s_and_b32 s23, s22, 7                  ; split")
    A(f"v_mov_b32 v{vZero}, 0")
    A("s_lshl_b32 s28, s25, 2")
    A(f"v_mov_b32 v1, s28")
    A("s_lshl_b32 s27, s25, 13")
    A(f"v_lshlrev_b32 v2, 3, v{vLn}            ; lane*8")
    A("s_mov_b32 s31, 0x3e0293ee")
    A("s_lshl_b32 s28, s25, 8")
    A(f"v_lshl_add_u32 v4, v{vLn}, 2, s28")
    A(f"s_cmp_lg_u32 s23, {comb}")
    A("s_cbranch_scc1 L_Hp")
    for i in range(4): A(f"v_mov_b32 v{h0+i}, -1")
    A(f"v_lshl_add_u32 v3, v{vLn}, 4, s27")
    A(f"v_add_u32 v5, 4096, v3")
    A("s_waitcnt lgkmcnt(0)")
    for i in range(4): A(f"global_store_dwordx4 v3, v[{h0}:{h0+3}], s[18:19] offset:{1024*i}")
    A(f"global_store_dwordx4 v5, v[{h0}:{h0+3}], s[18:19]")
    A(f"global_load_dword v{h0+4}, v4, s[4:5]")
    A(f"global_load_dword v{h0+5}, v4, s[10:11]")
    A(f"global_load_dword v{h0+6}, v4, s[12:13]")
    A(f"global_load_ushort v{h0+7}, v{vZero}, s[14:15]")
    A(f"v_mov_b32 v6, s37")
    STAMP(8)
    if sat:
        A("s_barrier")
        A("s_lshl_b32 s28, s25, 2")
        A("s_mov_b32 s29, s37")
        A("s_waitcnt vmcnt(4)")
        STAMP(9)
        A("s_atomic_add s29, s[16:17], s28 glc")
        if stamp: A("s_waitcnt lgkmcnt(0)")
        STAMP(1)
        if kvbar: A("s_barrier")
        A("s_waitcnt vmcnt(0) lgkmcnt(0)")
    else:
        A("s_waitcnt vmcnt(4)")
        STAMP(9)
        A("s_mov_b64 exec, 1")
        A(f"global_store_dword v1, v6, s[16:17]{annmod}")
        A("s_mov_b64 exec, -1")
        A("s_barrier")
        STAMP(1)
        if kvbar: A("s_barrier")
    A("s_waitcnt vmcnt(1)")
    tS, tV = h0 + 8, h0 + 10
    A(f"v_dot2_f32_bf16 v{tS}, v{h0+4}, v{h0+5}, 0")
    A(f"v_lshlrev_b32 v{h0+7}, 16, v{h0+7}")
    A(f"v_sub_f32 v{h0+7}, 1.0, v{h0+7}")
    A(f"v_mul_f32 v{h0+7}, 0xceabfb8f, v{h0+7}    ; -1e9*log2(e)")
    def wsum(r, t):
        for sh in (8, 4, 2, 1):
            A(f"v_add_f32_dpp v{r}, v{r}, v{r} row_ror:{sh} row_mask:0xf bank_mask:0xf")
        A(f"v_mov_b32 v{t}, v{r}")
        A(f"v_permlane16_swap_b32 v{t}, v{r}")
        A(f"v_add_f32 v{r}, v{r}, v{t}")
        A(f"v_mov_b32 v{t}, v{r}")
        A(f"v_permlane32_swap_b32 v{t}, v{r}")
        A(f"v_add_f32 v{r}, v{r}, v{t}")
    wsum(tS, h0)
    A(f"v_readfirstlane_b32 s28, v{tS}")
    A(f"v_lshlrev_b32 v{tV}, 16, v{h0+6}")
    A(f"v_and_b32 v{tV+1}, 0xffff0000, v{h0+6}")
    A(f"v_mov_b32 v{tS}, s28")
    A(f"v_fma_f32 v{tS}, v{tS}, s31, v{h0+7}")
    A("s_branch L_Hs")
    A.label("L_Hp")
    A("s_waitcnt lgkmcnt(0)")
    A("s_barrier")
    if kvbar: A("s_barrier")
    A.label("L_Hs")
    GUARD()
    A(f"ds_read_b64 v[{h0}:{h0+1}], v{vZero} offset:{C_ML}")
    A("s_waitcnt lgkmcnt(0)")
    A(f"v_readfirstlane_b32 s29, v{h0}")
    A("s_cmp_lt_u32 s29, 4")
    A("s_cbranch_scc1 L_Hs")
    A(f"v_readfirstlane_b32 s28, v{h0+1}")
    A(f"s_cmp_eq_u32 s28, {'s37' if not forceslow else '-1'}")
    A("s_cselect_b32 s36, 0, 0x80000000")
    STAMP(2)
    rc = h0 + 12
    ff = h0 + 20
    ml = h0 + 24
    for w in range(4):
        A(f"ds_read_b64 v[{rc+2*w}:{rc+2*w+1}], v2 offset:{REC+512*w}")
    A("s_lshl_b32 s28, s23, 3")
    A("s_add_u32 s28, s28, s27")
    A("s_add_u32 s28, s28, 4096")
    A("s_lshr_b32 s29, s36, 11")
    A("s_add_u32 s28, s28, s29")
    A("v_mov_b32 v7, s28")
    A("s_waitcnt lgkmcnt(0)")
    A(f"v_max3_f32 v{ml}, v{rc}, v{rc+2}, v{rc+4}")
    A(f"v_max_f32 v{ml}, v{ml}, v{rc+6}")
    for w in range(4): A(f"v_sub_f32 v{ff+w}, v{rc+2*w}, v{ml}")
    for w in range(4): A(f"v_exp_f32 v{ff+w}, v{ff+w}")
    A(f"v_mul_f32 v{ml+1}, v{ff}, v{rc+1}")
    for w in range(1, 4): A(f"v_fmac_f32 v{ml+1}, v{ff+w}, v{rc+2*w+1}")
    for w in range(4): A(f"v_and_b32 v{ff+w}, 0x7fffffff, v{ff+w}")
    for w in range(4): A(f"v_min_u32 v{ff+w}, 0x7ffffffe, v{ff+w}")
    for w in range(4): A(f"v_or_b32 v{ff+w}, s36, v{ff+w}")
    A("s_cmp_lg_u32 s36, 0")
    A("s_cbranch_scc1 L_nofac")
    A("s_mov_b64 exec, 1")
    A(f"ds_write_b128 v{vZero}, v[{ff}:{ff+3}] offset:{FAC}")
    A("s_mov_b64 exec, -1")
    A.label("L_nofac")
    wsum(ml + 1, h0)
    A(f"v_min_u32 v{ml}, -2, v{ml}")
    A(f"v_min_u32 v{ml+1}, -2, v{ml+1}")
    A("s_mov_b64 exec, 1")
    A("s_cbranch_scc1 L_mlslow")
    A(f"global_store_dwordx2 v7, v[{ml}:{ml+1}], s[18:19]")
    A("s_branch L_mldone")
    A.label("L_mlslow")
    A(f"global_store_dwordx2 v7, v[{ml}:{ml+1}], s[18:19] sc1")
    A("s_waitcnt vmcnt(0)")
    A(f"ds_write_b128 v{vZero}, v[{ff}:{ff+3}] offset:{FAC}")
    A.label("L_mldone")
    A("s_mov_b64 exec, -1")
    STAMP(3)
    A(f"s_cmp_lg_u32 s23, {comb}")
    A("s_cbranch_scc1 L_fin")
    R0, R1 = 72, 88
    aO = 48
    A(f"v_and_b32 v8, 7, v0")
    A("s_add_u32 s28, s27, 4096")
    A(f"v_lshl_add_u32 v7, v8, 3, s28")
    A("v_mov_b32 v10, v7")
    A("s_add_u32 s28, s27, 2048")
    A(f"v_add_u32 v3, s28, v2")
    A("s_mov_b32 s38, 0")
    A.label("L_ml")
    GUARD()
    A(f"global_load_dwordx2 v[{ml}:{ml+1}], v10, s[18:19] sc1")
    if spec:
        for j in range(8):
            A(f"global_load_dwordx2 v[{R0+2*j}:{R0+2*j+1}], v3, s[18:19] offset:{512*j-2048} sc1")
    A("s_add_u32 s38, s38, 1")
    A(f"s_waitcnt vmcnt({8 if spec else 0})")
    A(f"v_max_u32 v{h0}, v{ml}, v{ml+1}")
    A(f"v_cmp_eq_u32 vcc, -1, v{h0}")
    A("s_cbranch_vccz L_mlok")
    A("s_and_b32 s28, s38, 15")
    A("s_cbranch_scc1 L_ml")
    A(f"global_load_dword v{h0}, v1, s[16:17] offset:128 sc1")
    A("s_waitcnt vmcnt(0)")
    A(f"v_lshrrev_b32 v{h0}, v8, v{h0}")
    A(f"v_and_b32 v{h0}, 1, v{h0}")
    A(f"v_lshl_add_u32 v10, v{h0}, 20, v7")
    A("s_branch L_ml")
    A.label("L_mlok")
    STAMP(4)
    t0 = h0
    A(f"v_max_f32 v{t0}, v{ml}, v{tS}")
    A(f"v_sub_u32 v10, v10, v7")
    for sh in (4, 2, 1):
        A(f"v_max_f32_dpp v{t0}, v{t0}, v{t0} row_ror:{sh} row_mask:0xf bank_mask:0xf")
    A(f"v_sub_f32 v{ml}, v{ml}, v{t0}")
    A(f"v_sub_f32 v{tS}, v{tS}, v{t0}")
    A(f"v_exp_f32 v{ml}, v{ml}")
    A(f"v_exp_f32 v{tS}, v{tS}")
    A(f"v_mul_f32 v{ml+1}, v{ml}, v{ml+1}")
    for sh in (4, 2, 1):
        A(f"v_add_f32_dpp v{ml+1}, v{ml+1}, v{ml+1} row_ror:{sh} row_mask:0xf bank_mask:0xf")
    A(f"v_readfirstlane_b32 s28, v{ml+1}")
    for j in range(8): A(f"v_readlane_b32 s{48+j}, v10, {j}")
    A(f"v_add_f32 v{ml+1}, s28, v{tS}")
    A(f"v_rcp_f32 v{ml+1}, v{ml+1}")
    for j in range(8): A(f"v_add_u32 v{aO+j}, s{48+j}, v3")
    A(f"v_mul_f32 v{ml}, v{ml}, v{ml+1}")
    A(f"v_mul_f32 v{tS}, v{tS}, v{ml+1}")
    for j in range(8): A(f"v_readlane_b32 s{40+j}, v{ml}, {j}")
    A(f"v_mul_f32 v{tV}, v{tV}, v{tS}")
    A(f"v_mul_f32 v{tV+1}, v{tV+1}, v{tS}")
    STAMP(5)
    acc = h0 + 2
    def issue(R):
        for j in range(8):
            A(f"global_load_dwordx2 v[{R+2*j}:{R+2*j+1}], v{aO+j}, s[18:19] offset:{512*j-2048} sc1")
    def check(R):
        for j in range(8):
            src2 = f"v[{tV}:{tV+1}]" if j == 0 else f"v[{acc}:{acc+1}]"
            sp = 40 + (j & ~1)
            sel = "op_sel_hi:[0,1,1]" if j % 2 == 0 else "op_sel:[1,0,0] op_sel_hi:[1,1,1]"
            A(f"v_pk_fma_f32 v[{acc}:{acc+1}], s[{sp}:{sp+1}], v[{R+2*j}:{R+2*j+1}], {src2} {sel}")
            if j == 0: A(f"v_max_u32 v{t0}, v{R}, v{R+1}")
            else: A(f"v_max3_u32 v{t0}, v{R+2*j}, v{R+2*j+1}, v{t0}")
        A(f"v_cmp_eq_u32 vcc, -1, v{t0}")
        A(f"v_cvt_pk_bf16_f32 v{t0+1}, v{acc}, v{acc+1}")
        A("s_cmp_eq_u64 vcc, 0")
        A("s_cselect_b64 exec, -1, 0")
        A(f"global_store_dword v4, v{t0+1}, s[32:33]{outmod}")
        A("s_cbranch_scc1 L_done")
        A("s_mov_b64 exec, -1")
    if not spec: issue(R0)
    A.label("L_poll")
    GUARD()
    if stamp: A("s_add_u32 s38, s38, 0x10000")
    issue(R1)
    A("s_waitcnt vmcnt(8)")
    check(R0)
    issue(R0)
    A("s_waitcnt vmcnt(8)")
    check(R1)
    A("s_branch L_poll")
    A.label("L_done")
    if stamp:
        STAMP(6)
        A("s_waitcnt vmcnt(0)")
        STAMP(7)
        A("s_mov_b32 s84, s38")
    else:
        A("s_endpgm")
    A.label("L_fin")
    if stamp:
        A("s_waitcnt lgkmcnt(0)")
        A("s_mul_i32 s28, s2, 5"); A("s_add_u32 s28, s28, s26"); A("s_lshl_b32 s28, s28, 7"); A("s_add_u32 s28, s28, 0x8000000")
        A("s_mov_b64 exec, -1")
        A("v_mov_b32 v1, s28")
        for i in range(24): A(f"v_mov_b32 v{8+i}, s{64+i}")
        A("s_mov_b64 exec, 1")
        for i in range(6): A(f"global_store_dwordx4 v1, v[{8+4*i}:{11+4*i}], s[18:19] offset:{16*i}")
    A.label("L_end")
    A("s_endpgm")
    NV = max(NV, 104)
    A.raw('.section .rodata,"a"'); A.raw(".p2align 6"); A.raw(f".amdhsa_kernel {NAME}_kernel")
    A.raw(f"  .amdhsa_next_free_vgpr {NV}")
    A.raw(f"  .amdhsa_next_free_sgpr {96 if stamp else 64}")
    A.raw(f"  .amdhsa_accum_offset {(NV+3)//4*4}")
    A.raw("  .amdhsa_group_segment_fixed_size 0"); A.raw("  .amdhsa_kernarg_size 72"); A.raw("  .amdhsa_user_sgpr_count 2")
    A.raw("  .amdhsa_user_sgpr_kernarg_segment_ptr 1"); A.raw("  .amdhsa_system_sgpr_workgroup_id_x 1"); A.raw(".end_amdhsa_kernel")
    return A.text(), LDS_SZ

if __name__ == "__main__":
    ap = argparse.ArgumentParser()
    ap.add_argument("-o", default="cdna_kernels/%s.s" % NAME)
    ap.add_argument("-D", type=int, default=24)
    ap.add_argument("--nb", type=int, default=8)
    ap.add_argument("--map", default="zm")
    ap.add_argument("--stamp", action="store_true")
    ap.add_argument("--safe", action="store_true")
    ap.add_argument("--forceslow", action="store_true")
    ap.add_argument("--outmod", default="")
    ap.add_argument("--kvbar", action="store_true")
    ap.add_argument("--nospec", action="store_true")
    ap.add_argument("--comb", type=int, default=0)
    ap.add_argument("--prio", type=int, default=0)
    ap.add_argument("--pa", type=int, default=28)
    ap.add_argument("--annmod", default="")
    ap.add_argument("--nosat", action="store_true")
    a = ap.parse_args()
    t, l = gen(D=a.D, NB=a.nb, amap=a.map, stamp=a.stamp, safe=a.safe, forceslow=a.forceslow,
               outmod=(" " + a.outmod if a.outmod else ""), kvbar=a.kvbar, spec=not a.nospec, comb=a.comb, prio=a.prio, PA=a.pa, annmod=(' ' + a.annmod if a.annmod else ''), sat=not a.nosat)
    open(a.o, "w").write(t)
```

```python
import sys, argparse
from asmlib import Asm
NAME = "standalone__tree_speculative_verify_tree_attention_over_candidate_token_tree__decode"
HDR = open("cdna_kernels/%s.s.ref" % NAME).read().split("; Override")[0]

def gen(D=24, NB=8, amap="zm", stamp=False, safe=False, forceslow=False, outmod="", kvbar=False,
        spec=True, comb=0, prio=0, depth=2, PA=28, annmod='', sat=True, noclear=False, gate=0):
    NS_W = 4
    NL = 32
    NSL = min(2 * NL, D + 2)
    A = Asm()
    def STAMP(i):
        if stamp: A(f"s_memrealtime s[{64+2*i}:{65+2*i}]")
    def GUARD():
        if safe:
            A("s_add_u32 s63, s63, 1"); A("s_cmp_gt_u32 s63, 0x40000"); A("s_cbranch_scc1 L_end")
    def LG(n): return 0 if stamp else n
    C_ML, C_O, FAC, REC, OP = 0, 8, 16, 256, 256 + 2048
    LDS_SZ = OP + 2048
    C_OFF = 1 << 20
    vK = 1; vV = 5
    vLn = 9; vT = 10
    vB = 16
    vDt = 32
    vX = 40
    vMx = 42
    vM = 44
    vA = 48
    vO = 56
    vOne, vZero = 60, 61
    vRecA, vOpW, vOpR, vSl = 62, 63, 64, 65
    vAnn = 66
    vQ = 68
    vR = 72
    NV = vR + 4 * NSL
    A.raw(HDR.rstrip())
    A.raw(f"; @launch grid=(256,1,1) block=(320,1,1) lds={LDS_SZ}")
    A.raw('.amdgcn_target "amdgcn-amd-amdhsa--gfx950"'); A.raw(".text"); A.raw(f".globl {NAME}_kernel")
    A.raw(".p2align 8"); A.raw(f".type {NAME}_kernel,@function"); A.label(f"{NAME}_kernel")
    A("s_load_dwordx8 s[4:11], s[0:1], 0      ; q k v k_tree")
    STAMP(0)
    if safe: A("s_mov_b32 s63, 0")
    A(f"v_lshrrev_b32 v{vT}, 6, v0")
    A("s_cmp_ge_u32 s2, 256")
    A("s_cbranch_scc1 L_end")
    A(f"v_readfirstlane_b32 s26, v{vT}         ; wave")
    A(f"v_and_b32 v{vLn}, 63, v0")
    if amap == "zm":
        A("s_and_b32 s22, s2, 7"); A("s_lshl_b32 s22, s22, 5"); A("s_lshr_b32 s23, s2, 3"); A("s_or_b32 s22, s22, s23")
    elif amap == "xm":
        A("s_and_b32 s22, s2, 7"); A("s_lshl_b32 s22, s22, 2"); A("s_bfe_u32 s23, s2, 0x20003"); A("s_or_b32 s22, s22, s23")
        A("s_lshl_b32 s22, s22, 3"); A("s_lshr_b32 s23, s2, 5"); A("s_or_b32 s22, s22, s23")
    elif amap == "hm":
        A("s_mov_b32 s22, s2")
    A(f"v_bfe_i32 v{vT+1}, v0, 2, 1")
    A(f"v_lshlrev_b32 v{vT+2}, 2, v{vLn}")
    A(f"ds_write_b32 v{vT+2}, v{vT+1}")
    A("s_lshr_b32 s25, s22, 3                 ; head")
    A(f"s_cmp_eq_u32 s26, {NS_W}")
    A("s_cbranch_scc1 L_H")
    A("s_lshl_b32 s24, s22, 17")
    A("s_lshl_b32 s28, s26, 15")
    A("s_add_u32 s24, s24, s28")
    A("s_add_u32 s24, s24, 4096")
    A(f"v_and_b32 v{vT}, 3, v0")
    A(f"v_lshl_add_u32 v{vK}, v{vT}, 4, s24")
    A(f"v_bfe_u32 v{vT+1}, v0, 2, 2")
    A(f"v_lshl_add_u32 v{vK}, v{vT+1}, 8, v{vK}")
    A(f"v_bfe_u32 v{vT+1}, v0, 4, 2")
    A(f"v_lshl_add_u32 v{vK}, v{vT+1}, 6, v{vK}")
    A("s_lshl_b32 s28, s25, 8")
    A(f"v_lshrrev_b32 v{vT+2}, 2, v{vLn}")
    A(f"v_lshl_add_u32 v{vT+2}, v{vT+2}, 4, s28")
    for i in range(1, 4): A(f"v_add_u32 v{vK+i}, {8192*i}, v{vK}")
    A("s_waitcnt lgkmcnt(0)")
    STAMP(1)
    if prio: A(f"s_setprio {prio}")
    def slot(k): return vR + 4 * (k % NSL)
    def load(k):
        r = slot(k)
        if k < NL: base, va, i = "s[6:7]", vK, k
        else: base, va, i = "s[8:9]", vV, k - NL
        A(f"global_load_dwordx4 v[{r}:{r+3}], v{va + i//8}, {base} offset:{(i%8)*1024-4096} nt")
    pend = []
    def qk(k):
        t, c = k // 4, k % 4
        d = vDt + 4 * (t % 2)
        cc = "0" if c == 0 else f"v[{d}:{d+3}]"
        A(f"v_mfma_f32_16x16x32_bf16 v[{d}:{d+3}], v[{slot(k)}:{slot(k)+3}], v[{vB+4*c}:{vB+4*c+3}], {cc}")
    def red(t, i):
        h, u = t // 4, t % 4
        d = vDt + 4 * (t % 2)
        b = [x for x in range(4) if x != u][i]
        s1 = f"v{d+u}" if i == 0 else f"v{vX+h}"
        A(f"v_add_f32_dpp v{vX+h}, v{d+b}, {s1} row_ror:{(4*(u-b))%16} row_mask:0xf bank_mask:{hex(1<<u)}")
    def abuild(j):
        a = vA + 4 * (j % 2)
        for r in range(4):
            A(f"v_and_b32_dpp v{a+r}, v{vX + j//16}, v{vM+r} row_newbcast:{j%16} row_mask:0xf bank_mask:0xf")
    def pv(j):
        a = vA + 4 * (j % 2); r = slot(NL + j)
        cc = "0" if j == 0 else f"v[{vO}:{vO+3}]"
        A(f"v_mfma_f32_16x16x32_bf16 v[{vO}:{vO+3}], v[{a}:{a+3}], v[{r}:{r+3}], {cc}")
    def setup_after_first():
        A("s_load_dwordx4 s[16:19], s[0:1], 56")
        A(f"v_lshl_add_u32 v{vV}, v{vLn}, 4, s24")
        for i in range(1, 4): A(f"v_add_u32 v{vV+i}, {8192*i}, v{vV}")
        A(f"v_and_b32 v{vT+1}, 15, v0              ; n")
        A(f"v_and_b32 v{vT+3}, 1, v0")
        A(f"v_lshlrev_b32 v{vT+3}, 4, v{vT+3}")
        A(f"v_mov_b32 v{vT+4}, 0xffff")
        A(f"v_lshlrev_b32 v{vT+3}, v{vT+3}, v{vT+4}    ; 0xffff << 16*(n&1)")
        A(f"v_lshrrev_b32 v{vT+4}, 1, v{vT+1}")
        for r in range(4):
            A(f"v_cmp_eq_u32 s[{40+2*r}:{41+2*r}], {r}, v{vT+4}")
        for c in range(4):
            A(f"v_cmp_eq_u32 s[{48+2*c}:{49+2*c}], {c}, v{vT}")
        for r in range(4):
            A(f"v_cndmask_b32 v{vM+r}, 0, v{vT+3}, s[{40+2*r}:{41+2*r}]")
        A(f"v_mov_b32 v{vOne}, 1")
        A(f"v_mov_b32 v{vZero}, 0")
        A("s_lshl_b32 s28, s26, 9")
        A(f"v_lshlrev_b32 v{vOpR}, 3, v{vLn}")
        A(f"v_add_u32 v{vRecA}, s28, v{vOpR}")
        A(f"v_bfe_u32 v{vT+3}, v0, 4, 1")
        A(f"v_lshlrev_b32 v{vT+3}, 4, v{vT+3}")
        A(f"v_lshl_add_u32 v{vT+3}, v{vT+1}, 5, v{vT+3}")
        A(f"v_add_u32 v{vOpW}, s28, v{vT+3}")
        A("s_lshl_b32 s28, s25, 13")
        A("s_and_b32 s29, s22, 7")
        A("s_lshl_b32 s30, s29, 9")
        A("s_add_u32 s28, s28, s30")
        A(f"v_add_u32 v{vSl}, s28, v{vOpR}")
        A("s_mov_b32 s31, 0x3e0293ee              ; log2(e)/sqrt(128)")
        A("s_lshl_b32 s28, s25, 2")
        A(f"v_mov_b32 v{vAnn}, s28")
    def bmask():
        for c in range(4):
            for r in range(4):
                A(f"v_cndmask_b32 v{vB+4*c+r}, 0, v{vQ+r}, s[{48+2*c}:{49+2*c}]")
    def softmax():
        m = vMx
        A(f"v_max_f32 v{m}, v{vX}, v{vX+1}")
        for sh in (8, 4, 2, 1):
            A(f"v_max_f32_dpp v{m}, v{m}, v{m} row_ror:{sh} row_mask:0xf bank_mask:0xf")
        A(f"v_mov_b32 v{vT}, v{m}")
        A(f"v_permlane16_swap_b32 v{vT}, v{m}")
        A(f"v_max_f32 v{m}, v{m}, v{vT}")
        A(f"v_mov_b32 v{vT}, v{m}")
        A(f"v_permlane32_swap_b32 v{vT}, v{m}")
        A(f"v_max_f32 v{m}, v{m}, v{vT}")
        A(f"v_mul_f32 v{m}, s31, v{m}")
        for h in range(2): A(f"v_fma_f32 v{vX+h}, v{vX+h}, s31, -v{m}")
        for h in range(2): A(f"v_exp_f32 v{vX+h}, v{vX+h}")
        A(f"v_add_f32 v{m+1}, v{vX}, v{vX+1}")
        for h in range(2): A(f"v_cvt_pk_bf16_f32 v{vX+h}, v{vX+h}, v{vX+h}")
        A(f"ds_write_b64 v{vRecA}, v[{m}:{m+1}] offset:{REC}")
        STAMP(4)
    def publish():
        A("s_mov_b64 exec, 1")
        A(f"ds_or_b32 v{vZero}, v{vAnn} offset:{C_ML+4}")
        A(f"ds_add_u32 v{vZero}, v{vOne} offset:{C_ML}")
        A("s_mov_b64 exec, -1")
    A(f"global_load_dwordx4 v[{vQ}:{vQ+3}], v{vT+2}, s[4:5]")
    issued = 0
    def consume(k, outstanding_after):
        if k < NL:
            if k == 0:
                A(f"s_waitcnt vmcnt({min(63, outstanding_after + 1)})   ; q")
                bmask()
            A(f"s_waitcnt vmcnt({outstanding_after})")
            if k == 0: STAMP(2)
            qk(k)
            if pend: pend.pop(0)()
            if k % 4 == 3:
                t = k // 4
                pend.append(lambda: None)
                for i in range(3): pend.append(lambda t=t, i=i: red(t, i))
            if k == NL - 1:
                while pend: pend.pop(0)()
                softmax()
                if PA < NL - 1: publish()
                abuild(0)
        else:
            j = k - NL
            if j + 1 < NL: abuild(j + 1)
            A(f"s_waitcnt vmcnt({outstanding_after})")
            pv(j)
            if k == PA + 1: publish()
    assert NB <= PA < 2 * NL - 2
    def after(k, last):
        return last - k + (1 if k <= PA <= last else 0) - (1 if False else 0)
    for k in range(2 * NL):
        if kvbar and k == NL: A("s_barrier")
        load(k)
        if k == PA:
            A("s_waitcnt lgkmcnt(0)")
            A(f"global_load_dword v{vAnn}, v{vAnn}, s[16:17] sc1")
        if k == NB - 1:
            setup_after_first()
            A("s_barrier")
        if k - D >= 0: consume(k - D, after(k - D, k))
    STAMP(3)
    if gate:
        A("s_mov_b64 exec, 1")
        A(f"ds_add_u32 v{vZero}, v{vOne} offset:12")
        A("s_mov_b64 exec, -1")
    for k in range(max(0, 2 * NL - D), 2 * NL):
        consume(k, after(k, 2 * NL - 1))
    STAMP(5)
    f = vB; o = vB + 4
    A("s_mov_b32 exec_hi, 0")
    A(f"ds_write_b128 v{vOpW}, v[{vO}:{vO+3}] offset:{OP}")
    A("s_mov_b32 exec_lo, 1")
    A(f"ds_add_rtn_u32 v{vT}, v{vZero}, v{vOne} offset:{C_O}")
    A("s_mov_b64 exec, -1")
    A.label("L_fac")
    A(f"ds_read_b128 v[{f}:{f+3}], v{vZero} offset:{FAC}")
    for w in range(4):
        A(f"ds_read_b64 v[{o+2*w}:{o+2*w+1}], v{vOpR} offset:{OP+512*w}")
    A(f"s_waitcnt lgkmcnt({LG(4)})")
    A(f"v_max_u32 v{vT+1}, v{f}, v{f+1}")
    A(f"v_max3_u32 v{vT+1}, v{f+2}, v{f+3}, v{vT+1}")
    A(f"v_readfirstlane_b32 s28, v{vT}")
    A(f"v_readfirstlane_b32 s29, v{vT+1}")
    A(f"s_waitcnt lgkmcnt({LG(3)})")
    A(f"v_pk_mul_f32 v[{o}:{o+1}], v[{o}:{o+1}], v[{f}:{f+1}] op_sel_hi:[1,0]")
    A("s_cmp_lg_u32 s28, 3")
    A("s_cbranch_scc1 L_fin")
    A(f"s_waitcnt lgkmcnt({LG(2)})")
    A(f"v_pk_fma_f32 v[{o}:{o+1}], v[{o+2}:{o+3}], v[{f}:{f+1}], v[{o}:{o+1}] op_sel:[0,1,0] op_sel_hi:[1,1,1]")
    A(f"s_waitcnt lgkmcnt({LG(1)})")
    A(f"v_pk_fma_f32 v[{o}:{o+1}], v[{o+4}:{o+5}], v[{f+2}:{f+3}], v[{o}:{o+1}] op_sel_hi:[1,0,1]")
    A("s_waitcnt lgkmcnt(0)")
    A(f"v_pk_fma_f32 v[{o}:{o+1}], v[{o+6}:{o+7}], v[{f+2}:{f+3}], v[{o}:{o+1}] op_sel:[0,1,0] op_sel_hi:[1,1,1]")
    A("s_cmp_lt_i32 s29, 0")
    A("s_cbranch_scc1 L_slow")
    A(f"v_min_u32 v{o}, -2, v{o}")
    A(f"v_min_u32 v{o+1}, -2, v{o+1}")
    A(f"global_store_dwordx2 v{vSl}, v[{o}:{o+1}], s[18:19]")
    if stamp:
        STAMP(6); A("s_branch L_fin")
    else:
        A("s_endpgm")
    A.label("L_slow")
    GUARD()
    A("s_cmp_eq_u32 s29, -1")
    A("s_cbranch_scc1 L_fac")
    A(f"v_sub_f32 v{o}, 0, v{o}")
    A(f"v_sub_f32 v{o+1}, 0, v{o+1}")
    A(f"v_min_u32 v{o}, -2, v{o}")
    A(f"v_min_u32 v{o+1}, -2, v{o+1}")
    A(f"v_add_u32 v{vSl}, {C_OFF}, v{vSl}")
    A(f"global_store_dwordx2 v{vSl}, v[{o}:{o+1}], s[18:19] sc1")
    A("s_and_b32 s29, s22, 7")
    A("s_lshl_b32 s29, 1, s29")
    A(f"v_mov_b32 v{vT}, s29")
    A("s_lshl_b32 s28, s25, 2")
    A(f"v_mov_b32 v{vT+1}, s28")
    A("s_waitcnt vmcnt(0)")
    A("s_mov_b64 exec, 1")
    A(f"global_atomic_or v{vT+1}, v{vT}, s[16:17] offset:128 sc1")
    STAMP(6)
    A("s_branch L_fin")
    h0 = 16
    A.label("L_H")
    A("s_load_dwordx4 s[12:15], s[0:1], 32")
    A("s_load_dwordx2 s[32:33], s[0:1], 48")
    A("s_load_dwordx4 s[16:19], s[0:1], 56")
    A("s_getreg_b32 s37, hwreg(HW_REG_XCC_ID)")
    A("s_and_b32 s37, s37, 15")
    A("s_add_u32 s37, s37, 1")
    A("s_and_b32 s23, s22, 7                  ; split")
    A(f"v_mov_b32 v{vZero}, 0")
    A("s_lshl_b32 s28, s25, 2")
    A(f"v_mov_b32 v1, s28")
    A("s_lshl_b32 s27, s25, 13")
    A(f"v_lshlrev_b32 v2, 3, v{vLn}            ; lane*8")
    A("s_mov_b32 s31, 0x3e0293ee")
    A("s_lshl_b32 s28, s25, 8")
    A(f"v_lshl_add_u32 v4, v{vLn}, 2, s28")
    A(f"s_cmp_lg_u32 s23, {comb}")
    A("s_cbranch_scc1 L_Hp")
    for i in range(4): A(f"v_mov_b32 v{h0+i}, -1")
    A(f"v_lshl_add_u32 v3, v{vLn}, 4, s27")
    A(f"v_add_u32 v5, 4096, v3")
    A("s_waitcnt lgkmcnt(0)")
    if not noclear:
        for i in range(4): A(f"global_store_dwordx4 v3, v[{h0}:{h0+3}], s[18:19] offset:{1024*i}")
        A(f"global_store_dwordx4 v5, v[{h0}:{h0+3}], s[18:19]")
    A(f"global_load_dword v{h0+4}, v4, s[4:5]")
    A(f"global_load_dword v{h0+5}, v4, s[10:11]")
    A(f"global_load_dword v{h0+6}, v4, s[12:13]")
    A(f"global_load_ushort v{h0+7}, v{vZero}, s[14:15]")
    A(f"v_mov_b32 v6, s37")
    STAMP(8)
    if sat:
        A("s_barrier")
        A("s_lshl_b32 s28, s25, 2")
        A("s_mov_b32 s29, s37")
        A("s_waitcnt vmcnt(4)")
        STAMP(9)
        A("s_atomic_add s29, s[16:17], s28 glc")
        if stamp: A("s_waitcnt lgkmcnt(0)")
        STAMP(1)
        if kvbar: A("s_barrier")
        A("s_waitcnt vmcnt(0) lgkmcnt(0)")
    else:
        A("s_waitcnt vmcnt(4)")
        STAMP(9)
        A("s_mov_b64 exec, 1")
        A(f"global_store_dword v1, v6, s[16:17]{annmod}")
        A("s_mov_b64 exec, -1")
        A("s_barrier")
        STAMP(1)
        if kvbar: A("s_barrier")
    A("s_waitcnt vmcnt(1)")
    tS, tV = h0 + 8, h0 + 10
    A(f"v_dot2_f32_bf16 v{tS}, v{h0+4}, v{h0+5}, 0")
    A(f"v_lshlrev_b32 v{h0+7}, 16, v{h0+7}")
    A(f"v_sub_f32 v{h0+7}, 1.0, v{h0+7}")
    A(f"v_mul_f32 v{h0+7}, 0xceabfb8f, v{h0+7}    ; -1e9*log2(e)")
    def wsum(r, t):
        for sh in (8, 4, 2, 1):
            A(f"v_add_f32_dpp v{r}, v{r}, v{r} row_ror:{sh} row_mask:0xf bank_mask:0xf")
        A(f"v_mov_b32 v{t}, v{r}")
        A(f"v_permlane16_swap_b32 v{t}, v{r}")
        A(f"v_add_f32 v{r}, v{r}, v{t}")
        A(f"v_mov_b32 v{t}, v{r}")
        A(f"v_permlane32_swap_b32 v{t}, v{r}")
        A(f"v_add_f32 v{r}, v{r}, v{t}")
    wsum(tS, h0)
    A(f"v_readfirstlane_b32 s28, v{tS}")
    A(f"v_lshlrev_b32 v{tV}, 16, v{h0+6}")
    A(f"v_and_b32 v{tV+1}, 0xffff0000, v{h0+6}")
    A(f"v_mov_b32 v{tS}, s28")
    A(f"v_fma_f32 v{tS}, v{tS}, s31, v{h0+7}")
    A("s_branch L_Hs")
    A.label("L_Hp")
    A("s_waitcnt lgkmcnt(0)")
    A("s_barrier")
    if kvbar: A("s_barrier")
    A.label("L_Hs")
    GUARD()
    A(f"ds_read_b64 v[{h0}:{h0+1}], v{vZero} offset:{C_ML}")
    A("s_waitcnt lgkmcnt(0)")
    A(f"v_readfirstlane_b32 s29, v{h0}")
    A("s_cmp_lt_u32 s29, 4")
    A("s_cbranch_scc1 L_Hs")
    A(f"v_readfirstlane_b32 s28, v{h0+1}")
    A(f"s_cmp_eq_u32 s28, {'s37' if not forceslow else '-1'}")
    A("s_cselect_b32 s36, 0, 0x80000000")
    STAMP(2)
    rc = h0 + 12
    ff = h0 + 20
    ml = h0 + 24
    for w in range(4):
        A(f"ds_read_b64 v[{rc+2*w}:{rc+2*w+1}], v2 offset:{REC+512*w}")
    A("s_lshl_b32 s28, s23, 3")
    A("s_add_u32 s28, s28, s27")
    A("s_add_u32 s28, s28, 4096")
    A("s_lshr_b32 s29, s36, 11")
    A("s_add_u32 s28, s28, s29")
    A("v_mov_b32 v7, s28")
    A("s_waitcnt lgkmcnt(0)")
    A(f"v_max3_f32 v{ml}, v{rc}, v{rc+2}, v{rc+4}")
    A(f"v_max_f32 v{ml}, v{ml}, v{rc+6}")
    for w in range(4): A(f"v_sub_f32 v{ff+w}, v{rc+2*w}, v{ml}")
    for w in range(4): A(f"v_exp_f32 v{ff+w}, v{ff+w}")
    A(f"v_mul_f32 v{ml+1}, v{ff}, v{rc+1}")
    for w in range(1, 4): A(f"v_fmac_f32 v{ml+1}, v{ff+w}, v{rc+2*w+1}")
    for w in range(4): A(f"v_and_b32 v{ff+w}, 0x7fffffff, v{ff+w}")
    for w in range(4): A(f"v_min_u32 v{ff+w}, 0x7ffffffe, v{ff+w}")
    for w in range(4): A(f"v_or_b32 v{ff+w}, s36, v{ff+w}")
    A("s_cmp_lg_u32 s36, 0")
    A("s_cbranch_scc1 L_nofac")
    A("s_mov_b64 exec, 1")
    A(f"ds_write_b128 v{vZero}, v[{ff}:{ff+3}] offset:{FAC}")
    A("s_mov_b64 exec, -1")
    A.label("L_nofac")
    wsum(ml + 1, h0)
    A(f"v_min_u32 v{ml}, -2, v{ml}")
    A(f"v_min_u32 v{ml+1}, -2, v{ml+1}")
    A("s_mov_b64 exec, 1")
    A("s_cbranch_scc1 L_mlslow")
    A(f"global_store_dwordx2 v7, v[{ml}:{ml+1}], s[18:19]")
    A("s_branch L_mldone")
    A.label("L_mlslow")
    A(f"global_store_dwordx2 v7, v[{ml}:{ml+1}], s[18:19] sc1")
    A("s_waitcnt vmcnt(0)")
    A(f"ds_write_b128 v{vZero}, v[{ff}:{ff+3}] offset:{FAC}")
    A.label("L_mldone")
    A("s_mov_b64 exec, -1")
    STAMP(3)
    A(f"s_cmp_lg_u32 s23, {comb}")
    A("s_cbranch_scc1 L_fin")
    R0, R1 = 72, 88
    aO = 48
    A(f"v_and_b32 v8, 7, v0")
    A("s_add_u32 s28, s27, 4096")
    A(f"v_lshl_add_u32 v7, v8, 3, s28")
    A("v_mov_b32 v10, v7")
    A("s_add_u32 s28, s27, 2048")
    A(f"v_add_u32 v3, s28, v2")
    A("s_mov_b32 s38, 0")
    if gate:
        A.label("L_gate")
        GUARD()
        A(f"ds_read_b32 v{h0}, v{vZero} offset:12")
        A("s_waitcnt lgkmcnt(0)")
        A(f"v_readfirstlane_b32 s29, v{h0}")
        A(f"s_cmp_lt_u32 s29, {gate}")
        A("s_cbranch_scc1 L_gate")
    A.label("L_ml")
    GUARD()
    A(f"global_load_dwordx2 v[{ml}:{ml+1}], v10, s[18:19] sc1")
    if spec:
        for j in range(8):
            A(f"global_load_dwordx2 v[{R0+2*j}:{R0+2*j+1}], v3, s[18:19] offset:{512*j-2048} sc1")
    A("s_add_u32 s38, s38, 1")
    A(f"s_waitcnt vmcnt({8 if spec else 0})")
    A(f"v_max_u32 v{h0}, v{ml}, v{ml+1}")
    A(f"v_cmp_eq_u32 vcc, -1, v{h0}")
    A("s_cbranch_vccz L_mlok")
    A("s_and_b32 s28, s38, 15")
    A("s_cbranch_scc1 L_ml")
    A(f"global_load_dword v{h0}, v1, s[16:17] offset:128 sc1")
    A("s_waitcnt vmcnt(0)")
    A(f"v_lshrrev_b32 v{h0}, v8, v{h0}")
    A(f"v_and_b32 v{h0}, 1, v{h0}")
    A(f"v_lshl_add_u32 v10, v{h0}, 20, v7")
    A("s_branch L_ml")
    A.label("L_mlok")
    STAMP(4)
    t0 = h0
    A(f"v_max_f32 v{t0}, v{ml}, v{tS}")
    A(f"v_sub_u32 v10, v10, v7")
    for sh in (4, 2, 1):
        A(f"v_max_f32_dpp v{t0}, v{t0}, v{t0} row_ror:{sh} row_mask:0xf bank_mask:0xf")
    A(f"v_sub_f32 v{ml}, v{ml}, v{t0}")
    A(f"v_sub_f32 v{tS}, v{tS}, v{t0}")
    A(f"v_exp_f32 v{ml}, v{ml}")
    A(f"v_exp_f32 v{tS}, v{tS}")
    A(f"v_mul_f32 v{ml+1}, v{ml}, v{ml+1}")
    for sh in (4, 2, 1):
        A(f"v_add_f32_dpp v{ml+1}, v{ml+1}, v{ml+1} row_ror:{sh} row_mask:0xf bank_mask:0xf")
    A(f"v_readfirstlane_b32 s28, v{ml+1}")
    for j in range(8): A(f"v_readlane_b32 s{48+j}, v10, {j}")
    A(f"v_add_f32 v{ml+1}, s28, v{tS}")
    A(f"v_rcp_f32 v{ml+1}, v{ml+1}")
    for j in range(8): A(f"v_add_u32 v{aO+j}, s{48+j}, v3")
    A(f"v_mul_f32 v{ml}, v{ml}, v{ml+1}")
    A(f"v_mul_f32 v{tS}, v{tS}, v{ml+1}")
    for j in range(8): A(f"v_readlane_b32 s{40+j}, v{ml}, {j}")
    A(f"v_mul_f32 v{tV}, v{tV}, v{tS}")
    A(f"v_mul_f32 v{tV+1}, v{tV+1}, v{tS}")
    STAMP(5)
    acc = h0 + 2
    def issue(R):
        for j in range(8):
            A(f"global_load_dwordx2 v[{R+2*j}:{R+2*j+1}], v{aO+j}, s[18:19] offset:{512*j-2048} sc1")
    def check(R):
        for j in range(8):
            src2 = f"v[{tV}:{tV+1}]" if j == 0 else f"v[{acc}:{acc+1}]"
            sp = 40 + (j & ~1)
            sel = "op_sel_hi:[0,1,1]" if j % 2 == 0 else "op_sel:[1,0,0] op_sel_hi:[1,1,1]"
            A(f"v_pk_fma_f32 v[{acc}:{acc+1}], s[{sp}:{sp+1}], v[{R+2*j}:{R+2*j+1}], {src2} {sel}")
            if j == 0: A(f"v_max_u32 v{t0}, v{R}, v{R+1}")
            else: A(f"v_max3_u32 v{t0}, v{R+2*j}, v{R+2*j+1}, v{t0}")
        A(f"v_cmp_eq_u32 vcc, -1, v{t0}")
        A(f"v_cvt_pk_bf16_f32 v{t0+1}, v{acc}, v{acc+1}")
        A("s_cmp_eq_u64 vcc, 0")
        A("s_cselect_b64 exec, -1, 0")
        A(f"global_store_dword v4, v{t0+1}, s[32:33]{outmod}")
        A("s_cbranch_scc1 L_done")
        A("s_mov_b64 exec, -1")
    if not spec: issue(R0)
    A.label("L_poll")
    GUARD()
    if stamp: A("s_add_u32 s38, s38, 0x10000")
    issue(R1)
    A("s_waitcnt vmcnt(8)")
    check(R0)
    issue(R0)
    A("s_waitcnt vmcnt(8)")
    check(R1)
    A("s_branch L_poll")
    A.label("L_done")
    if stamp:
        STAMP(6)
        A("s_waitcnt vmcnt(0)")
        STAMP(7)
        A("s_mov_b32 s84, s38")
    else:
        A("s_endpgm")
    A.label("L_fin")
    if stamp:
        A("s_waitcnt lgkmcnt(0)")
        A("s_mul_i32 s28, s2, 5"); A("s_add_u32 s28, s28, s26"); A("s_lshl_b32 s28, s28, 7"); A("s_add_u32 s28, s28, 0x8000000")
        A("s_mov_b64 exec, -1")
        A("v_mov_b32 v1, s28")
        for i in range(24): A(f"v_mov_b32 v{8+i}, s{64+i}")
        A("s_mov_b64 exec, 1")
        for i in range(6): A(f"global_store_dwordx4 v1, v[{8+4*i}:{11+4*i}], s[18:19] offset:{16*i}")
    A.label("L_end")
    A("s_endpgm")
    NV = max(NV, 104)
    A.raw('.section .rodata,"a"'); A.raw(".p2align 6"); A.raw(f".amdhsa_kernel {NAME}_kernel")
    A.raw(f"  .amdhsa_next_free_vgpr {NV}")
    A.raw(f"  .amdhsa_next_free_sgpr {96 if stamp else 64}")
    A.raw(f"  .amdhsa_accum_offset {(NV+3)//4*4}")
    A.raw("  .amdhsa_group_segment_fixed_size 0"); A.raw("  .amdhsa_kernarg_size 72"); A.raw("  .amdhsa_user_sgpr_count 2")
    A.raw("  .amdhsa_user_sgpr_kernarg_segment_ptr 1"); A.raw("  .amdhsa_system_sgpr_workgroup_id_x 1"); A.raw(".end_amdhsa_kernel")
    return A.text(), LDS_SZ

if __name__ == "__main__":
    ap = argparse.ArgumentParser()
    ap.add_argument("-o", default="cdna_kernels/%s.s" % NAME)
    ap.add_argument("-D", type=int, default=24)
    ap.add_argument("--nb", type=int, default=8)
    ap.add_argument("--map", default="zm")
    ap.add_argument("--stamp", action="store_true")
    ap.add_argument("--safe", action="store_true")
    ap.add_argument("--forceslow", action="store_true")
    ap.add_argument("--outmod", default="")
    ap.add_argument("--kvbar", action="store_true")
    ap.add_argument("--nospec", action="store_true")
    ap.add_argument("--comb", type=int, default=0)
    ap.add_argument("--prio", type=int, default=0)
    ap.add_argument("--pa", type=int, default=28)
    ap.add_argument("--annmod", default="")
    ap.add_argument("--nosat", action="store_true")
    ap.add_argument("--noclear", action="store_true")
    ap.add_argument("--gate", type=int, default=0)
    a = ap.parse_args()
    t, l = gen(D=a.D, NB=a.nb, amap=a.map, stamp=a.stamp, safe=a.safe, forceslow=a.forceslow,
               outmod=(" " + a.outmod if a.outmod else ""), kvbar=a.kvbar, spec=not a.nospec, comb=a.comb, prio=a.prio, PA=a.pa, annmod=(' ' + a.annmod if a.annmod else ''), sat=not a.nosat, noclear=a.noclear, gate=a.gate)
    open(a.o, "w").write(t)
```

```python
import sys, argparse
from asmlib import Asm
NAME = "standalone__tree_speculative_verify_tree_attention_over_candidate_token_tree__decode"
HDR = open("cdna_kernels/%s.s.ref" % NAME).read().split("; Override")[0]

def gen(D=24, NB=8, amap="zm", stamp=False, safe=False, forceslow=False, outmod="", kvbar=False,
        spec=True, comb=0, prio=0, depth=2, PA=28, annmod='', sat=True, noclear=False, gate=0, slowchk=16,
        QP=-1, warmout=False, vpre=False, cpre=False, iwarm=False, tail2=False, pm=' sc1', hprio=0, tprio=0, sw=0):
    NS_W = 4
    NL = 32
    NSL = min(2 * NL, D + 2)
    A = Asm()
    def STAMP(i):
        if stamp: A(f"s_memrealtime s[{64+2*i}:{65+2*i}]")
    def GUARD():
        if safe:
            A("s_add_u32 s63, s63, 1"); A("s_cmp_gt_u32 s63, 0x40000"); A("s_cbranch_scc1 L_end")
    def LG(n): return 0 if stamp else n
    C_ML, C_O, FAC, REC, OP = 0, 8, 16, 256, 256 + 2048
    LDS_SZ = OP + 2048
    C_OFF = 1 << 20
    vK = 1; vV = 5
    vLn = 9; vT = 10
    vB = 16
    vDt = 32
    vX = 40
    vMx = 42
    vM = 44
    vA = 48
    vO = 56
    vOne, vZero = 60, 61
    vRecA, vOpW, vOpR, vSl = 62, 63, 64, 65
    vAnn = 66
    vQ = 68
    vR = 72
    NV = vR + 4 * NSL
    A.raw(HDR.rstrip())
    A.raw(f"; @launch grid=(256,1,1) block=(320,1,1) lds={LDS_SZ}")
    A.raw('.amdgcn_target "amdgcn-amd-amdhsa--gfx950"'); A.raw(".text"); A.raw(f".globl {NAME}_kernel")
    A.raw(".p2align 8"); A.raw(f".type {NAME}_kernel,@function"); A.label(f"{NAME}_kernel")
    A("s_load_dwordx8 s[4:11], s[0:1], 0      ; q k v k_tree")
    STAMP(0)
    if safe: A("s_mov_b32 s63, 0")
    A(f"v_lshrrev_b32 v{vT}, 6, v0")
    A("s_cmp_ge_u32 s2, 256")
    A("s_cbranch_scc1 L_end")
    A(f"v_readfirstlane_b32 s26, v{vT}         ; wave")
    A(f"v_and_b32 v{vLn}, 63, v0")
    if amap == "zm":
        A("s_and_b32 s22, s2, 7"); A("s_lshl_b32 s22, s22, 5"); A("s_lshr_b32 s23, s2, 3"); A("s_or_b32 s22, s22, s23")
    elif amap == "xm":
        A("s_and_b32 s22, s2, 7"); A("s_lshl_b32 s22, s22, 2"); A("s_bfe_u32 s23, s2, 0x20003"); A("s_or_b32 s22, s22, s23")
        A("s_lshl_b32 s22, s22, 3"); A("s_lshr_b32 s23, s2, 5"); A("s_or_b32 s22, s22, s23")
    elif amap == "hm":
        A("s_mov_b32 s22, s2")
    A(f"v_bfe_i32 v{vT+1}, v0, 2, 1")
    A(f"v_lshlrev_b32 v{vT+2}, 2, v{vLn}")
    A(f"ds_write_b32 v{vT+2}, v{vT+1}")
    A("s_lshr_b32 s25, s22, 3                 ; head")
    A(f"s_cmp_eq_u32 s26, {NS_W}")
    A("s_cbranch_scc1 L_H")
    A("s_lshl_b32 s24, s22, 17")
    if sw == 1: A("s_mul_i32 s28, s26, 0xa000")
    else: A("s_lshl_b32 s28, s26, 15")
    A("s_add_u32 s24, s24, s28")
    A("s_add_u32 s24, s24, 4096")
    A(f"v_and_b32 v{vT}, 3, v0")
    A(f"v_lshl_add_u32 v{vK}, v{vT}, 4, s24")
    A(f"v_bfe_u32 v{vT+1}, v0, 2, 2")
    A(f"v_lshl_add_u32 v{vK}, v{vT+1}, 8, v{vK}")
    A(f"v_bfe_u32 v{vT+1}, v0, 4, 2")
    A(f"v_lshl_add_u32 v{vK}, v{vT+1}, 6, v{vK}")
    A("s_lshl_b32 s28, s25, 8")
    A(f"v_lshrrev_b32 v{vT+2}, 2, v{vLn}")
    A(f"v_lshl_add_u32 v{vT+2}, v{vT+2}, 4, s28")
    AX = "v_xor_b32" if sw == 1 else "v_add_u32"
    for i in range(1, 4): A(f"{AX} v{vK+i}, {8192*i}, v{vK}")
    A("s_waitcnt lgkmcnt(0)")
    STAMP(1)
    if prio: A(f"s_setprio {prio}")
    def slot(k): return vR + 4 * (k % NSL)
    def load(k):
        r = slot(k)
        if k < NL: base, va, i = "s[6:7]", vK, k
        else: base, va, i = "s[8:9]", vV, k - NL
        A(f"global_load_dwordx4 v[{r}:{r+3}], v{va + i//8}, {base} offset:{(i%8)*1024-4096} nt")
    pend = []
    def qk(k):
        t, c = k // 4, k % 4
        d = vDt + 4 * (t % 2)
        cc = "0" if c == 0 else f"v[{d}:{d+3}]"
        A(f"v_mfma_f32_16x16x32_bf16 v[{d}:{d+3}], v[{slot(k)}:{slot(k)+3}], v[{vB+4*c}:{vB+4*c+3}], {cc}")
    def red(t, i):
        h, u = t // 4, t % 4
        d = vDt + 4 * (t % 2)
        b = [x for x in range(4) if x != u][i]
        s1 = f"v{d+u}" if i == 0 else f"v{vX+h}"
        A(f"v_add_f32_dpp v{vX+h}, v{d+b}, {s1} row_ror:{(4*(u-b))%16} row_mask:0xf bank_mask:{hex(1<<u)}")
    def abuild(j):
        a = vA + 4 * (j % 2)
        for r in range(4):
            A(f"v_and_b32_dpp v{a+r}, v{vX + j//16}, v{vM+r} row_newbcast:{j%16} row_mask:0xf bank_mask:0xf")
    def pv(j):
        a = vA + 4 * (j % 2); r = slot(NL + j)
        cc = "0" if j == 0 else f"v[{vO}:{vO+3}]"
        A(f"v_mfma_f32_16x16x32_bf16 v[{vO}:{vO+3}], v[{a}:{a+3}], v[{r}:{r+3}], {cc}")
    def setup_after_first():
        A("s_load_dwordx4 s[16:19], s[0:1], 56")
        A(f"v_lshl_add_u32 v{vV}, v{vLn}, 4, s24")
        for i in range(1, 4): A(f"{AX} v{vV+i}, {8192*i}, v{vV}")
        A(f"v_and_b32 v{vT+1}, 15, v0              ; n")
        A(f"v_and_b32 v{vT+3}, 1, v0")
        A(f"v_lshlrev_b32 v{vT+3}, 4, v{vT+3}")
        A(f"v_mov_b32 v{vT+4}, 0xffff")
        A(f"v_lshlrev_b32 v{vT+3}, v{vT+3}, v{vT+4}    ; 0xffff << 16*(n&1)")
        A(f"v_lshrrev_b32 v{vT+4}, 1, v{vT+1}")
        for r in range(4):
            A(f"v_cmp_eq_u32 s[{40+2*r}:{41+2*r}], {r}, v{vT+4}")
        for c in range(4):
            A(f"v_cmp_eq_u32 s[{48+2*c}:{49+2*c}], {c}, v{vT}")
        for r in range(4):
            A(f"v_cndmask_b32 v{vM+r}, 0, v{vT+3}, s[{40+2*r}:{41+2*r}]")
        A(f"v_mov_b32 v{vOne}, 1")
        A(f"v_mov_b32 v{vZero}, 0")
        A("s_lshl_b32 s28, s26, 9")
        A(f"v_lshlrev_b32 v{vOpR}, 3, v{vLn}")
        A(f"v_add_u32 v{vRecA}, s28, v{vOpR}")
        A(f"v_bfe_u32 v{vT+3}, v0, 4, 1")
        A(f"v_lshlrev_b32 v{vT+3}, 4, v{vT+3}")
        A(f"v_lshl_add_u32 v{vT+3}, v{vT+1}, 5, v{vT+3}")
        A(f"v_add_u32 v{vOpW}, s28, v{vT+3}")
        A("s_lshl_b32 s28, s25, 13")
        A("s_and_b32 s29, s22, 7")
        A("s_lshl_b32 s30, s29, 9")
        A("s_add_u32 s28, s28, s30")
        A(f"v_add_u32 v{vSl}, s28, v{vOpR}")
        A("s_mov_b32 s31, 0x3e0293ee              ; log2(e)/sqrt(128)")
        A("s_lshl_b32 s28, s25, 2")
        A(f"v_mov_b32 v{vAnn}, s28")
    def bmask():
        for c in range(4):
            for r in range(4):
                A(f"v_cndmask_b32 v{vB+4*c+r}, 0, v{vQ+r}, s[{48+2*c}:{49+2*c}]")
    def softmax():
        m = vMx
        A(f"v_max_f32 v{m}, v{vX}, v{vX+1}")
        for sh in (8, 4, 2, 1):
            A(f"v_max_f32_dpp v{m}, v{m}, v{m} row_ror:{sh} row_mask:0xf bank_mask:0xf")
        A(f"v_mov_b32 v{vT}, v{m}")
        A(f"v_permlane16_swap_b32 v{vT}, v{m}")
        A(f"v_max_f32 v{m}, v{m}, v{vT}")
        A(f"v_mov_b32 v{vT}, v{m}")
        A(f"v_permlane32_swap_b32 v{vT}, v{m}")
        A(f"v_max_f32 v{m}, v{m}, v{vT}")
        A(f"v_mul_f32 v{m}, s31, v{m}")
        for h in range(2): A(f"v_fma_f32 v{vX+h}, v{vX+h}, s31, -v{m}")
        for h in range(2): A(f"v_exp_f32 v{vX+h}, v{vX+h}")
        A(f"v_add_f32 v{m+1}, v{vX}, v{vX+1}")
        for h in range(2): A(f"v_cvt_pk_bf16_f32 v{vX+h}, v{vX+h}, v{vX+h}")
        A(f"ds_write_b64 v{vRecA}, v[{m}:{m+1}] offset:{REC}")
        STAMP(4)
    def publish():
        A("s_mov_b64 exec, 1")
        A(f"ds_or_b32 v{vZero}, v{vAnn} offset:{C_ML+4}")
        A(f"ds_add_u32 v{vZero}, v{vOne} offset:{C_ML}")
        A("s_mov_b64 exec, -1")
    def qload(): A(f"global_load_dwordx4 v[{vQ}:{vQ+3}], v{vT+2}, s[4:5]")
    if QP < 0: qload()
    issued = 0
    def consume(k, outstanding_after):
        if k < NL:
            if k == 0:
                if QP < 0: A(f"s_waitcnt vmcnt({min(63, outstanding_after + 1)})   ; q")
                else: A(f"s_waitcnt vmcnt({outstanding_after - QP - 1})   ; q")
                bmask()
            if k > QP: A(f"s_waitcnt vmcnt({outstanding_after})")
            if k == 0: STAMP(2)
            qk(k)
            if pend: pend.pop(0)()
            if k % 4 == 3:
                t = k // 4
                pend.append(lambda: None)
                for i in range(3): pend.append(lambda t=t, i=i: red(t, i))
            if k == NL - 1:
                while pend: pend.pop(0)()
                softmax()
                if PA < NL - 1: publish()
                abuild(0)
        else:
            j = k - NL
            if j + 1 < NL: abuild(j + 1)
            A(f"s_waitcnt vmcnt({outstanding_after})")
            pv(j)
            if k == PA + 1: publish()
    assert NB <= PA < 2 * NL - 2
    def after(k, last):
        return last - k + (1 if k <= PA <= last else 0) + (1 if k <= QP <= last else 0)
    for k in range(2 * NL):
        if kvbar and k == NL: A("s_barrier")
        load(k)
        if k == QP: qload()
        if k == PA:
            A("s_waitcnt lgkmcnt(0)")
            A(f"global_load_dword v{vAnn}, v{vAnn}, s[16:17] sc1")
        if k == NB - 1:
            setup_after_first()
            A("s_barrier")
        if k - D >= 0: consume(k - D, after(k - D, k))
    STAMP(3)
    if gate:
        A("s_mov_b64 exec, 1")
        A(f"ds_add_u32 v{vZero}, v{vOne} offset:12")
        A("s_mov_b64 exec, -1")
    for k in range(max(0, 2 * NL - D), 2 * NL):
        consume(k, after(k, 2 * NL - 1))
    STAMP(5)
    if tprio: A(f"s_setprio {tprio}")
    f = vB; o = vB + 4
    A("s_mov_b32 exec_hi, 0")
    A(f"ds_write_b128 v{vOpW}, v[{vO}:{vO+3}] offset:{OP}")
    A("s_mov_b32 exec_lo, 1")
    A(f"ds_add_rtn_u32 v{vT}, v{vZero}, v{vOne} offset:{C_O}")
    A("s_mov_b64 exec, -1")
    A.label("L_fac")
    A(f"ds_read_b128 v[{f}:{f+3}], v{vZero} offset:{FAC}")
    for w in range(4):
        A(f"ds_read_b64 v[{o+2*w}:{o+2*w+1}], v{vOpR} offset:{OP+512*w}")
    A(f"s_waitcnt lgkmcnt({LG(4)})")
    A(f"v_max_u32 v{vT+1}, v{f}, v{f+1}")
    A(f"v_max3_u32 v{vT+1}, v{f+2}, v{f+3}, v{vT+1}")
    A(f"v_readfirstlane_b32 s28, v{vT}")
    A(f"v_readfirstlane_b32 s29, v{vT+1}")
    A(f"s_waitcnt lgkmcnt({LG(3)})")
    A(f"v_pk_mul_f32 v[{o}:{o+1}], v[{o}:{o+1}], v[{f}:{f+1}] op_sel_hi:[1,0]")
    if not tail2:
        A("s_cmp_lg_u32 s28, 3")
        A("s_cbranch_scc1 L_fin")
    else:
        A("s_cmp_eq_u32 s28, 3")
        A("s_cselect_b32 s29, s29, 0")
        A("s_cselect_b64 s[34:35], -1, 0")
    A(f"s_waitcnt lgkmcnt({LG(2)})")
    A(f"v_pk_fma_f32 v[{o}:{o+1}], v[{o+2}:{o+3}], v[{f}:{f+1}], v[{o}:{o+1}] op_sel:[0,1,0] op_sel_hi:[1,1,1]")
    A(f"s_waitcnt lgkmcnt({LG(1)})")
    A(f"v_pk_fma_f32 v[{o}:{o+1}], v[{o+4}:{o+5}], v[{f+2}:{f+3}], v[{o}:{o+1}] op_sel_hi:[1,0,1]")
    A("s_waitcnt lgkmcnt(0)")
    A(f"v_pk_fma_f32 v[{o}:{o+1}], v[{o+6}:{o+7}], v[{f+2}:{f+3}], v[{o}:{o+1}] op_sel:[0,1,0] op_sel_hi:[1,1,1]")
    A("s_cmp_lt_i32 s29, 0")
    A("s_cbranch_scc1 L_slow")
    A(f"v_min_u32 v{o}, -2, v{o}")
    A(f"v_min_u32 v{o+1}, -2, v{o+1}")
    if tail2: A("s_mov_b64 exec, s[34:35]")
    A(f"global_store_dwordx2 v{vSl}, v[{o}:{o+1}], s[18:19]")
    if stamp:
        if tail2:
            A("s_cbranch_execz L_fin")
        STAMP(6); A("s_branch L_fin")
    else:
        A("s_endpgm")
    A.label("L_slow")
    GUARD()
    A("s_cmp_eq_u32 s29, -1")
    A("s_cbranch_scc1 L_fac")
    A(f"v_sub_f32 v{o}, 0, v{o}")
    A(f"v_sub_f32 v{o+1}, 0, v{o+1}")
    A(f"v_min_u32 v{o}, -2, v{o}")
    A(f"v_min_u32 v{o+1}, -2, v{o+1}")
    A(f"v_add_u32 v{vSl}, {C_OFF}, v{vSl}")
    A(f"global_store_dwordx2 v{vSl}, v[{o}:{o+1}], s[18:19] sc1")
    A("s_and_b32 s29, s22, 7")
    A("s_lshl_b32 s29, 1, s29")
    A(f"v_mov_b32 v{vT}, s29")
    A("s_lshl_b32 s28, s25, 2")
    A(f"v_mov_b32 v{vT+1}, s28")
    A("s_waitcnt vmcnt(0)")
    A("s_mov_b64 exec, 1")
    A(f"global_atomic_or v{vT+1}, v{vT}, s[16:17] offset:128 sc1")
    STAMP(6)
    A("s_branch L_fin")
    h0 = 16
    A.label("L_H")
    A("s_load_dwordx4 s[12:15], s[0:1], 32")
    A("s_load_dwordx2 s[32:33], s[0:1], 48")
    A("s_load_dwordx4 s[16:19], s[0:1], 56")
    A("s_getreg_b32 s37, hwreg(HW_REG_XCC_ID)")
    A("s_and_b32 s37, s37, 15")
    A("s_add_u32 s37, s37, 1")
    A("s_and_b32 s23, s22, 7                  ; split")
    A(f"v_mov_b32 v{vZero}, 0")
    A("s_lshl_b32 s28, s25, 2")
    A(f"v_mov_b32 v1, s28")
    A("s_lshl_b32 s27, s25, 13")
    A(f"v_lshlrev_b32 v2, 3, v{vLn}            ; lane*8")
    A("s_mov_b32 s31, 0x3e0293ee")
    A("s_lshl_b32 s28, s25, 8")
    A(f"v_lshl_add_u32 v4, v{vLn}, 2, s28")
    if hprio: A(f"s_setprio {hprio}")
    def warmers(tag):
        n = 0
        if vpre:
            A(f"v_and_b32 v12, 3, v0")
            A("s_lshl_b32 s28, s22, 17")
            A(f"v_lshl_add_u32 v12, v12, 15, s28")
            A(f"global_load_dword v13, v12, s[8:9] nt")
            n += 1
        if cpre:
            lab = f"L_pc{tag}"
            A("s_getpc_b64 s[34:35]")
            A.label(lab)
            A(f"s_sub_u32 s34, s34, {lab}-{NAME}_kernel")
            A("s_subb_u32 s35, s35, 0")
            A(f"v_lshlrev_b32 v12, 7, v{vLn}")
            A(f"v_min_u32 v12, L_end-{NAME}_kernel, v12")
            A(f"global_load_dword v14, v12, s[34:35]")
            n += 1
        return n
    A(f"s_cmp_lg_u32 s23, {comb}")
    A("s_cbranch_scc1 L_Hp")
    for i in range(4): A(f"v_mov_b32 v{h0+i}, -1")
    A(f"v_lshl_add_u32 v3, v{vLn}, 4, s27")
    A(f"v_add_u32 v5, 4096, v3")
    A("s_waitcnt lgkmcnt(0)")
    if not noclear:
        for i in range(4): A(f"global_store_dwordx4 v3, v[{h0}:{h0+3}], s[18:19] offset:{1024*i}")
        A(f"global_store_dwordx4 v5, v[{h0}:{h0+3}], s[18:19]")
    A(f"global_load_dword v{h0+4}, v4, s[4:5]")
    A(f"global_load_dword v{h0+5}, v4, s[10:11]")
    A(f"global_load_dword v{h0+6}, v4, s[12:13]")
    A(f"global_load_ushort v{h0+7}, v{vZero}, s[14:15]")
    nx = 0
    if warmout:
        A(f"global_load_dword v11, v4, s[32:33]")
        nx += 1
    nx += warmers("c")
    A(f"v_mov_b32 v6, s37")
    STAMP(8)
    if sat:
        A("s_barrier")
        A("s_lshl_b32 s28, s25, 2")
        A("s_mov_b32 s29, s37")
        A(f"s_waitcnt vmcnt({4+nx})")
        STAMP(9)
        A("s_atomic_add s29, s[16:17], s28 glc")
        if stamp: A("s_waitcnt lgkmcnt(0)")
        STAMP(1)
        if kvbar: A("s_barrier")
        A(f"s_waitcnt vmcnt({nx}) lgkmcnt(0)")
    else:
        A(f"s_waitcnt vmcnt({4+nx})")
        STAMP(9)
        A("s_mov_b64 exec, 1")
        A(f"global_store_dword v1, v6, s[16:17]{annmod}")
        A("s_mov_b64 exec, -1")
        A("s_barrier")
        STAMP(1)
        if kvbar: A("s_barrier")
        A(f"s_waitcnt vmcnt({1+nx})")
    tS, tV = h0 + 8, h0 + 10
    A(f"v_dot2_f32_bf16 v{tS}, v{h0+4}, v{h0+5}, 0")
    A(f"v_lshlrev_b32 v{h0+7}, 16, v{h0+7}")
    A(f"v_sub_f32 v{h0+7}, 1.0, v{h0+7}")
    A(f"v_mul_f32 v{h0+7}, 0xceabfb8f, v{h0+7}    ; -1e9*log2(e)")
    def wsum(r, t):
        for sh in (8, 4, 2, 1):
            A(f"v_add_f32_dpp v{r}, v{r}, v{r} row_ror:{sh} row_mask:0xf bank_mask:0xf")
        A(f"v_mov_b32 v{t}, v{r}")
        A(f"v_permlane16_swap_b32 v{t}, v{r}")
        A(f"v_add_f32 v{r}, v{r}, v{t}")
        A(f"v_mov_b32 v{t}, v{r}")
        A(f"v_permlane32_swap_b32 v{t}, v{r}")
        A(f"v_add_f32 v{r}, v{r}, v{t}")
    wsum(tS, h0)
    A(f"v_readfirstlane_b32 s28, v{tS}")
    A(f"v_lshlrev_b32 v{tV}, 16, v{h0+6}")
    A(f"v_and_b32 v{tV+1}, 0xffff0000, v{h0+6}")
    A(f"v_mov_b32 v{tS}, s28")
    A(f"v_fma_f32 v{tS}, v{tS}, s31, v{h0+7}")
    R0, R1 = 72, 88
    aO = 48
    def comb_setup():
        A(f"v_and_b32 v8, 7, v0")
        A("s_add_u32 s28, s27, 4096")
        A(f"v_lshl_add_u32 v5, v8, 3, s28")
        A("v_mov_b32 v10, v5")
        A("s_add_u32 s28, s27, 2048")
        A(f"v_add_u32 v3, s28, v2")
        A("s_mov_b32 s38, 0")
    if iwarm:
        comb_setup()
        for j in range(8): A(f"v_mov_b32 v{aO+j}, v3")
        A("s_mov_b64 s[34:35], 0")
        A("s_mov_b32 s39, 2")
        A("s_mov_b64 exec, 0")
        A("s_branch L_ml")
    else:
        A("s_branch L_Hs")
    A.label("L_Hp")
    A("s_waitcnt lgkmcnt(0)")
    warmers("p")
    A("s_barrier")
    if kvbar: A("s_barrier")
    A.label("L_Hs")
    GUARD()
    A(f"ds_read_b64 v[{h0}:{h0+1}], v{vZero} offset:{C_ML}")
    A("s_waitcnt lgkmcnt(0)")
    A(f"v_readfirstlane_b32 s29, v{h0}")
    A("s_cmp_lt_u32 s29, 4")
    A("s_cbranch_scc1 L_Hs")
    A(f"v_readfirstlane_b32 s28, v{h0+1}")
    A(f"s_cmp_eq_u32 s28, {'s37' if not forceslow else '-1'}")
    A("s_cselect_b32 s36, 0, 0x80000000")
    STAMP(2)
    rc = h0 + 12
    ff = h0 + 20
    ml = h0 + 24
    for w in range(4):
        A(f"ds_read_b64 v[{rc+2*w}:{rc+2*w+1}], v2 offset:{REC+512*w}")
    A("s_lshl_b32 s28, s23, 3")
    A("s_add_u32 s28, s28, s27")
    A("s_add_u32 s28, s28, 4096")
    A("s_lshr_b32 s29, s36, 11")
    A("s_add_u32 s28, s28, s29")
    A("v_mov_b32 v7, s28")
    A("s_waitcnt lgkmcnt(0)")
    A(f"v_max3_f32 v{ml}, v{rc}, v{rc+2}, v{rc+4}")
    A(f"v_max_f32 v{ml}, v{ml}, v{rc+6}")
    for w in range(4): A(f"v_sub_f32 v{ff+w}, v{rc+2*w}, v{ml}")
    for w in range(4): A(f"v_exp_f32 v{ff+w}, v{ff+w}")
    A(f"v_mul_f32 v{ml+1}, v{ff}, v{rc+1}")
    for w in range(1, 4): A(f"v_fmac_f32 v{ml+1}, v{ff+w}, v{rc+2*w+1}")
    for w in range(4): A(f"v_and_b32 v{ff+w}, 0x7fffffff, v{ff+w}")
    for w in range(4): A(f"v_min_u32 v{ff+w}, 0x7ffffffe, v{ff+w}")
    for w in range(4): A(f"v_or_b32 v{ff+w}, s36, v{ff+w}")
    A("s_cmp_lg_u32 s36, 0")
    A("s_cbranch_scc1 L_nofac")
    A("s_mov_b64 exec, 1")
    A(f"ds_write_b128 v{vZero}, v[{ff}:{ff+3}] offset:{FAC}")
    A("s_mov_b64 exec, -1")
    A.label("L_nofac")
    wsum(ml + 1, h0)
    A(f"v_min_u32 v{ml}, -2, v{ml}")
    A(f"v_min_u32 v{ml+1}, -2, v{ml+1}")
    A("s_mov_b64 exec, 1")
    A("s_cbranch_scc1 L_mlslow")
    A(f"global_store_dwordx2 v7, v[{ml}:{ml+1}], s[18:19]")
    A("s_branch L_mldone")
    A.label("L_mlslow")
    A(f"global_store_dwordx2 v7, v[{ml}:{ml+1}], s[18:19] sc1")
    A("s_waitcnt vmcnt(0)")
    A(f"ds_write_b128 v{vZero}, v[{ff}:{ff+3}] offset:{FAC}")
    A.label("L_mldone")
    A("s_mov_b64 exec, -1")
    STAMP(3)
    A(f"s_cmp_lg_u32 s23, {comb}")
    A("s_cbranch_scc1 L_fin")
    comb_setup()
    if gate:
        A.label("L_gate")
        GUARD()
        A(f"ds_read_b32 v{h0}, v{vZero} offset:12")
        A("s_waitcnt lgkmcnt(0)")
        A(f"v_readfirstlane_b32 s29, v{h0}")
        A(f"s_cmp_lt_u32 s29, {gate}")
        A("s_cbranch_scc1 L_gate")
    A.label("L_ml")
    GUARD()
    A(f"global_load_dwordx2 v[{ml}:{ml+1}], v10, s[18:19] sc1")
    if spec:
        for j in range(8):
            A(f"global_load_dwordx2 v[{R0+2*j}:{R0+2*j+1}], v3, s[18:19] offset:{512*j-2048}{pm}")
    A("s_add_u32 s38, s38, 1")
    A(f"s_waitcnt vmcnt({8 if spec else 0})")
    A(f"v_max_u32 v{h0}, v{ml}, v{ml+1}")
    A(f"v_cmp_eq_u32 vcc, -1, v{h0}")
    A("s_cbranch_vccz L_mlok")
    A(f"s_and_b32 s28, s38, {slowchk-1}")
    A("s_cbranch_scc1 L_ml")
    A(f"global_load_dword v{h0}, v1, s[16:17] offset:128 sc1")
    A("s_waitcnt vmcnt(0)")
    A(f"v_lshrrev_b32 v{h0}, v8, v{h0}")
    A(f"v_and_b32 v{h0}, 1, v{h0}")
    A(f"v_lshl_add_u32 v10, v{h0}, 20, v5")
    A("s_branch L_ml")
    A.label("L_mlok")
    STAMP(4)
    t0 = h0
    A(f"v_max_f32 v{t0}, v{ml}, v{tS}")
    A(f"v_sub_u32 v10, v10, v5")
    for sh in (4, 2, 1):
        A(f"v_max_f32_dpp v{t0}, v{t0}, v{t0} row_ror:{sh} row_mask:0xf bank_mask:0xf")
    A(f"v_sub_f32 v{ml}, v{ml}, v{t0}")
    A(f"v_sub_f32 v{tS}, v{tS}, v{t0}")
    A(f"v_exp_f32 v{ml}, v{ml}")
    A(f"v_exp_f32 v{tS}, v{tS}")
    A(f"v_mul_f32 v{ml+1}, v{ml}, v{ml+1}")
    for sh in (4, 2, 1):
        A(f"v_add_f32_dpp v{ml+1}, v{ml+1}, v{ml+1} row_ror:{sh} row_mask:0xf bank_mask:0xf")
    A(f"v_readfirstlane_b32 s28, v{ml+1}")
    for j in range(8): A(f"v_readlane_b32 s{48+j}, v10, {j}")
    A(f"v_add_f32 v{ml+1}, s28, v{tS}")
    A(f"v_rcp_f32 v{ml+1}, v{ml+1}")
    for j in range(8): A(f"v_add_u32 v{aO+j}, s{48+j}, v3")
    A(f"v_mul_f32 v{ml}, v{ml}, v{ml+1}")
    A(f"v_mul_f32 v{tS}, v{tS}, v{ml+1}")
    for j in range(8): A(f"v_readlane_b32 s{40+j}, v{ml}, {j}")
    A(f"v_mul_f32 v{tV}, v{tV}, v{tS}")
    A(f"v_mul_f32 v{tV+1}, v{tV+1}, v{tS}")
    STAMP(5)
    acc = h0 + 2
    def issue(R):
        for j in range(8):
            A(f"global_load_dwordx2 v[{R+2*j}:{R+2*j+1}], v{aO+j}, s[18:19] offset:{512*j-2048} sc1")
    def check(R):
        for j in range(8):
            src2 = f"v[{tV}:{tV+1}]" if j == 0 else f"v[{acc}:{acc+1}]"
            sp = 40 + (j & ~1)
            sel = "op_sel_hi:[0,1,1]" if j % 2 == 0 else "op_sel:[1,0,0] op_sel_hi:[1,1,1]"
            A(f"v_pk_fma_f32 v[{acc}:{acc+1}], s[{sp}:{sp+1}], v[{R+2*j}:{R+2*j+1}], {src2} {sel}")
            if j == 0: A(f"v_max_u32 v{t0}, v{R}, v{R+1}")
            else: A(f"v_max3_u32 v{t0}, v{R+2*j}, v{R+2*j+1}, v{t0}")
        A(f"v_cmp_eq_u32 vcc, -1, v{t0}")
        A(f"v_cvt_pk_bf16_f32 v{t0+1}, v{acc}, v{acc+1}")
        A("s_cmp_eq_u64 vcc, 0")
        A("s_cselect_b64 exec, s[34:35], 0" if iwarm else "s_cselect_b64 exec, -1, 0")
        A(f"global_store_dword v4, v{t0+1}, s[32:33]{outmod}")
        A("s_cbranch_scc1 L_done")
        A("s_mov_b64 exec, -1")
    if not spec: issue(R0)
    A.label("L_poll")
    GUARD()
    if stamp: A("s_add_u32 s38, s38, 0x10000")
    issue(R1)
    A("s_waitcnt vmcnt(8)")
    check(R0)
    A.label("L_poll2")
    issue(R0)
    A("s_waitcnt vmcnt(8)")
    check(R1)
    A("s_branch L_poll")
    A.label("L_done")
    if iwarm:
        A("s_cbranch_execz L_warm")
    if stamp:
        STAMP(6)
        A("s_waitcnt vmcnt(0)")
        STAMP(7)
        A("s_mov_b32 s84, s38")
    else:
        A("s_endpgm")
    if iwarm:
        if stamp: A("s_branch L_fin")
        A.label("L_warm")
        A("s_sub_u32 s39, s39, 1")
        A("s_cmp_eq_u32 s39, 1")
        A("s_cbranch_scc1 L_poll2")
        A("s_mov_b64 s[34:35], -1")
        A("s_mov_b32 s38, 0")
        A("s_mov_b64 exec, -1")
        STAMP(11)
        A("s_branch L_Hs")
    A.label("L_fin")
    if stamp:
        A("s_waitcnt lgkmcnt(0)")
        A("s_mul_i32 s28, s2, 5"); A("s_add_u32 s28, s28, s26"); A("s_lshl_b32 s28, s28, 7"); A("s_add_u32 s28, s28, 0x8000000")
        A("s_mov_b64 exec, -1")
        A("v_mov_b32 v1, s28")
        for i in range(24): A(f"v_mov_b32 v{8+i}, s{64+i}")
        A("s_mov_b64 exec, 1")
        for i in range(6): A(f"global_store_dwordx4 v1, v[{8+4*i}:{11+4*i}], s[18:19] offset:{16*i}")
    A.label("L_end")
    A("s_endpgm")
    NV = max(NV, 104)
    A.raw('.section .rodata,"a"'); A.raw(".p2align 6"); A.raw(f".amdhsa_kernel {NAME}_kernel")
    A.raw(f"  .amdhsa_next_free_vgpr {NV}")
    A.raw(f"  .amdhsa_next_free_sgpr {96 if stamp else 64}")
    A.raw(f"  .amdhsa_accum_offset {(NV+3)//4*4}")
    A.raw("  .amdhsa_group_segment_fixed_size 0"); A.raw("  .amdhsa_kernarg_size 72"); A.raw("  .amdhsa_user_sgpr_count 2")
    A.raw("  .amdhsa_user_sgpr_kernarg_segment_ptr 1"); A.raw("  .amdhsa_system_sgpr_workgroup_id_x 1"); A.raw(".end_amdhsa_kernel")
    return A.text(), LDS_SZ

if __name__ == "__main__":
    ap = argparse.ArgumentParser()
    ap.add_argument("-o", default="cdna_kernels/%s.s" % NAME)
    ap.add_argument("-D", type=int, default=24)
    ap.add_argument("--nb", type=int, default=8)
    ap.add_argument("--map", default="zm")
    ap.add_argument("--stamp", action="store_true")
    ap.add_argument("--safe", action="store_true")
    ap.add_argument("--forceslow", action="store_true")
    ap.add_argument("--outmod", default="")
    ap.add_argument("--kvbar", action="store_true")
    ap.add_argument("--nospec", action="store_true")
    ap.add_argument("--comb", type=int, default=0)
    ap.add_argument("--prio", type=int, default=0)
    ap.add_argument("--pa", type=int, default=28)
    ap.add_argument("--annmod", default="")
    ap.add_argument("--nosat", action="store_true")
    ap.add_argument("--noclear", action="store_true")
    ap.add_argument("--gate", type=int, default=0)
    ap.add_argument("--slowchk", type=int, default=16)
    ap.add_argument("--qp", type=int, default=-1)
    for o in ("warmout", "vpre", "cpre", "iwarm", "tail2"): ap.add_argument("--" + o, action="store_true")
    ap.add_argument("--sw", type=int, default=0)
    ap.add_argument("--hprio", type=int, default=0)
    ap.add_argument("--tprio", type=int, default=0)
    a = ap.parse_args()
    t, l = gen(D=a.D, NB=a.nb, amap=a.map, stamp=a.stamp, safe=a.safe, forceslow=a.forceslow,
               outmod=(" " + a.outmod if a.outmod else ""), kvbar=a.kvbar, spec=not a.nospec, comb=a.comb, prio=a.prio, PA=a.pa, annmod=(' ' + a.annmod if a.annmod else ''), sat=not a.nosat, noclear=a.noclear, gate=a.gate, slowchk=a.slowchk,
               QP=a.qp, warmout=a.warmout, vpre=a.vpre, cpre=a.cpre, iwarm=a.iwarm, tail2=a.tail2, hprio=a.hprio, tprio=a.tprio, sw=a.sw)
    open(a.o, "w").write(t)
```

```python
import sys, argparse
from asmlib import Asm
NAME = "standalone__tree_speculative_verify_tree_attention_over_candidate_token_tree__decode"
HDR = open("cdna_kernels/%s.s.ref" % NAME).read().split("; Override")[0]

def gen(D=24, NB=8, amap="zm", stamp=False, safe=False, forceslow=False, outmod="", kvbar=False,
        spec=True, comb=0, prio=0, depth=2, PA=28, annmod='', sat=True, noclear=False, gate=0, slowchk=16,
        QP=-1, warmout=False, vpre=False, cpre=False, iwarm=False, tail2=False, pm=' sc1', hprio=0, tprio=0, sw=0, pg=0, cpre0=False):
    NS_W = 4
    NL = 32
    NSL = min(2 * NL, D + 2)
    A = Asm()
    def STAMP(i):
        if stamp: A(f"s_memrealtime s[{64+2*i}:{65+2*i}]")
    def GUARD():
        if safe:
            A("s_add_u32 s63, s63, 1"); A("s_cmp_gt_u32 s63, 0x40000"); A("s_cbranch_scc1 L_end")
    def LG(n): return 0 if stamp else n
    C_ML, C_O, FAC, REC, OP = 0, 8, 16, 256, 256 + 2048
    LDS_SZ = OP + 2048
    C_OFF = 1 << 20
    vK = 1; vV = 5
    vLn = 9; vT = 10
    vB = 16
    vDt = 32
    vX = 40
    vMx = 42
    vM = 44
    vA = 48
    vO = 56
    vOne, vZero = 60, 61
    vRecA, vOpW, vOpR, vSl = 62, 63, 64, 65
    vAnn = 66
    vQ = 68
    vR = 72
    NV = vR + 4 * NSL
    A.raw(HDR.rstrip())
    A.raw(f"; @launch grid=(256,1,1) block=(320,1,1) lds={LDS_SZ}")
    A.raw('.amdgcn_target "amdgcn-amd-amdhsa--gfx950"'); A.raw(".text"); A.raw(f".globl {NAME}_kernel")
    if pg: A.raw(".p2align 12")
    A.raw(".p2align 8"); A.raw(f".type {NAME}_kernel,@function"); A.label(f"{NAME}_kernel")
    A("s_load_dwordx8 s[4:11], s[0:1], 0      ; q k v k_tree")
    STAMP(0)
    if safe: A("s_mov_b32 s63, 0")
    A(f"v_lshrrev_b32 v{vT}, 6, v0")
    A("s_cmp_ge_u32 s2, 256")
    A("s_cbranch_scc1 L_end")
    A(f"v_readfirstlane_b32 s26, v{vT}         ; wave")
    A(f"v_and_b32 v{vLn}, 63, v0")
    if amap == "zm":
        A("s_and_b32 s22, s2, 7"); A("s_lshl_b32 s22, s22, 5"); A("s_lshr_b32 s23, s2, 3"); A("s_or_b32 s22, s22, s23")
    elif amap == "xm":
        A("s_and_b32 s22, s2, 7"); A("s_lshl_b32 s22, s22, 2"); A("s_bfe_u32 s23, s2, 0x20003"); A("s_or_b32 s22, s22, s23")
        A("s_lshl_b32 s22, s22, 3"); A("s_lshr_b32 s23, s2, 5"); A("s_or_b32 s22, s22, s23")
    elif amap == "hm":
        A("s_mov_b32 s22, s2")
    A(f"v_bfe_i32 v{vT+1}, v0, 2, 1")
    A(f"v_lshlrev_b32 v{vT+2}, 2, v{vLn}")
    A(f"ds_write_b32 v{vT+2}, v{vT+1}")
    A("s_lshr_b32 s25, s22, 3                 ; head")
    A(f"s_cmp_eq_u32 s26, {NS_W}")
    A("s_cbranch_scc1 L_H")
    A("s_lshl_b32 s24, s22, 17")
    if sw == 1: A("s_mul_i32 s28, s26, 0xa000")
    else: A("s_lshl_b32 s28, s26, 15")
    A("s_add_u32 s24, s24, s28")
    A("s_add_u32 s24, s24, 4096")
    A(f"v_and_b32 v{vT}, 3, v0")
    A(f"v_lshl_add_u32 v{vK}, v{vT}, 4, s24")
    A(f"v_bfe_u32 v{vT+1}, v0, 2, 2")
    A(f"v_lshl_add_u32 v{vK}, v{vT+1}, 8, v{vK}")
    A(f"v_bfe_u32 v{vT+1}, v0, 4, 2")
    A(f"v_lshl_add_u32 v{vK}, v{vT+1}, 6, v{vK}")
    A("s_lshl_b32 s28, s25, 8")
    A(f"v_lshrrev_b32 v{vT+2}, 2, v{vLn}")
    A(f"v_lshl_add_u32 v{vT+2}, v{vT+2}, 4, s28")
    AX = "v_xor_b32" if sw == 1 else "v_add_u32"
    for i in range(1, 4): A(f"{AX} v{vK+i}, {8192*i}, v{vK}")
    A("s_waitcnt lgkmcnt(0)")
    STAMP(1)
    if prio: A(f"s_setprio {prio}")
    def slot(k): return vR + 4 * (k % NSL)
    def load(k):
        r = slot(k)
        if k < NL: base, va, i = "s[6:7]", vK, k
        else: base, va, i = "s[8:9]", vV, k - NL
        A(f"global_load_dwordx4 v[{r}:{r+3}], v{va + i//8}, {base} offset:{(i%8)*1024-4096} nt")
    pend = []
    def qk(k):
        t, c = k // 4, k % 4
        d = vDt + 4 * (t % 2)
        cc = "0" if c == 0 else f"v[{d}:{d+3}]"
        A(f"v_mfma_f32_16x16x32_bf16 v[{d}:{d+3}], v[{slot(k)}:{slot(k)+3}], v[{vB+4*c}:{vB+4*c+3}], {cc}")
    def red(t, i):
        h, u = t // 4, t % 4
        d = vDt + 4 * (t % 2)
        b = [x for x in range(4) if x != u][i]
        s1 = f"v{d+u}" if i == 0 else f"v{vX+h}"
        A(f"v_add_f32_dpp v{vX+h}, v{d+b}, {s1} row_ror:{(4*(u-b))%16} row_mask:0xf bank_mask:{hex(1<<u)}")
    def abuild(j):
        a = vA + 4 * (j % 2)
        for r in range(4):
            A(f"v_and_b32_dpp v{a+r}, v{vX + j//16}, v{vM+r} row_newbcast:{j%16} row_mask:0xf bank_mask:0xf")
    def pv(j):
        a = vA + 4 * (j % 2); r = slot(NL + j)
        cc = "0" if j == 0 else f"v[{vO}:{vO+3}]"
        A(f"v_mfma_f32_16x16x32_bf16 v[{vO}:{vO+3}], v[{a}:{a+3}], v[{r}:{r+3}], {cc}")
    def setup_after_first():
        A("s_load_dwordx4 s[16:19], s[0:1], 56")
        A(f"v_lshl_add_u32 v{vV}, v{vLn}, 4, s24")
        for i in range(1, 4): A(f"{AX} v{vV+i}, {8192*i}, v{vV}")
        A(f"v_and_b32 v{vT+1}, 15, v0              ; n")
        A(f"v_and_b32 v{vT+3}, 1, v0")
        A(f"v_lshlrev_b32 v{vT+3}, 4, v{vT+3}")
        A(f"v_mov_b32 v{vT+4}, 0xffff")
        A(f"v_lshlrev_b32 v{vT+3}, v{vT+3}, v{vT+4}    ; 0xffff << 16*(n&1)")
        A(f"v_lshrrev_b32 v{vT+4}, 1, v{vT+1}")
        for r in range(4):
            A(f"v_cmp_eq_u32 s[{40+2*r}:{41+2*r}], {r}, v{vT+4}")
        for c in range(4):
            A(f"v_cmp_eq_u32 s[{48+2*c}:{49+2*c}], {c}, v{vT}")
        for r in range(4):
            A(f"v_cndmask_b32 v{vM+r}, 0, v{vT+3}, s[{40+2*r}:{41+2*r}]")
        A(f"v_mov_b32 v{vOne}, 1")
        A(f"v_mov_b32 v{vZero}, 0")
        A("s_lshl_b32 s28, s26, 9")
        A(f"v_lshlrev_b32 v{vOpR}, 3, v{vLn}")
        A(f"v_add_u32 v{vRecA}, s28, v{vOpR}")
        A(f"v_bfe_u32 v{vT+3}, v0, 4, 1")
        A(f"v_lshlrev_b32 v{vT+3}, 4, v{vT+3}")
        A(f"v_lshl_add_u32 v{vT+3}, v{vT+1}, 5, v{vT+3}")
        A(f"v_add_u32 v{vOpW}, s28, v{vT+3}")
        A("s_lshl_b32 s28, s25, 13")
        A("s_and_b32 s29, s22, 7")
        A("s_lshl_b32 s30, s29, 9")
        A("s_add_u32 s28, s28, s30")
        A(f"v_add_u32 v{vSl}, s28, v{vOpR}")
        A("s_mov_b32 s31, 0x3e0293ee              ; log2(e)/sqrt(128)")
        A("s_lshl_b32 s28, s25, 2")
        A(f"v_mov_b32 v{vAnn}, s28")
    def bmask():
        for c in range(4):
            for r in range(4):
                A(f"v_cndmask_b32 v{vB+4*c+r}, 0, v{vQ+r}, s[{48+2*c}:{49+2*c}]")
    def softmax():
        m = vMx
        A(f"v_max_f32 v{m}, v{vX}, v{vX+1}")
        for sh in (8, 4, 2, 1):
            A(f"v_max_f32_dpp v{m}, v{m}, v{m} row_ror:{sh} row_mask:0xf bank_mask:0xf")
        A(f"v_mov_b32 v{vT}, v{m}")
        A(f"v_permlane16_swap_b32 v{vT}, v{m}")
        A(f"v_max_f32 v{m}, v{m}, v{vT}")
        A(f"v_mov_b32 v{vT}, v{m}")
        A(f"v_permlane32_swap_b32 v{vT}, v{m}")
        A(f"v_max_f32 v{m}, v{m}, v{vT}")
        A(f"v_mul_f32 v{m}, s31, v{m}")
        for h in range(2): A(f"v_fma_f32 v{vX+h}, v{vX+h}, s31, -v{m}")
        for h in range(2): A(f"v_exp_f32 v{vX+h}, v{vX+h}")
        A(f"v_add_f32 v{m+1}, v{vX}, v{vX+1}")
        for h in range(2): A(f"v_cvt_pk_bf16_f32 v{vX+h}, v{vX+h}, v{vX+h}")
        A(f"ds_write_b64 v{vRecA}, v[{m}:{m+1}] offset:{REC}")
        STAMP(4)
    def publish():
        A("s_mov_b64 exec, 1")
        A(f"ds_or_b32 v{vZero}, v{vAnn} offset:{C_ML+4}")
        A(f"ds_add_u32 v{vZero}, v{vOne} offset:{C_ML}")
        A("s_mov_b64 exec, -1")
    def qload(): A(f"global_load_dwordx4 v[{vQ}:{vQ+3}], v{vT+2}, s[4:5]")
    if QP < 0: qload()
    issued = 0
    def consume(k, outstanding_after):
        if k < NL:
            if k == 0:
                if QP < 0: A(f"s_waitcnt vmcnt({min(63, outstanding_after + 1)})   ; q")
                else: A(f"s_waitcnt vmcnt({outstanding_after - QP - 1})   ; q")
                bmask()
            if k > QP: A(f"s_waitcnt vmcnt({outstanding_after})")
            if k == 0: STAMP(2)
            qk(k)
            if pend: pend.pop(0)()
            if k % 4 == 3:
                t = k // 4
                pend.append(lambda: None)
                for i in range(3): pend.append(lambda t=t, i=i: red(t, i))
            if k == NL - 1:
                while pend: pend.pop(0)()
                softmax()
                if PA < NL - 1: publish()
                abuild(0)
        else:
            j = k - NL
            if j + 1 < NL: abuild(j + 1)
            A(f"s_waitcnt vmcnt({outstanding_after})")
            pv(j)
            if k == PA + 1: publish()
    assert NB <= PA < 2 * NL - 2
    def after(k, last):
        return last - k + (1 if k <= PA <= last else 0) + (1 if k <= QP <= last else 0)
    for k in range(2 * NL):
        if kvbar and k == NL: A("s_barrier")
        load(k)
        if k == QP: qload()
        if k == PA:
            A("s_waitcnt lgkmcnt(0)")
            A(f"global_load_dword v{vAnn}, v{vAnn}, s[16:17] sc1")
        if k == NB - 1:
            setup_after_first()
            A("s_barrier")
        if k - D >= 0: consume(k - D, after(k - D, k))
    STAMP(3)
    if gate:
        A("s_mov_b64 exec, 1")
        A(f"ds_add_u32 v{vZero}, v{vOne} offset:12")
        A("s_mov_b64 exec, -1")
    for k in range(max(0, 2 * NL - D), 2 * NL):
        consume(k, after(k, 2 * NL - 1))
    STAMP(5)
    if tprio: A(f"s_setprio {tprio}")
    f = vB; o = vB + 4
    A("s_mov_b32 exec_hi, 0")
    A(f"ds_write_b128 v{vOpW}, v[{vO}:{vO+3}] offset:{OP}")
    A("s_mov_b32 exec_lo, 1")
    A(f"ds_add_rtn_u32 v{vT}, v{vZero}, v{vOne} offset:{C_O}")
    A("s_mov_b64 exec, -1")
    A.label("L_fac")
    A(f"ds_read_b128 v[{f}:{f+3}], v{vZero} offset:{FAC}")
    for w in range(4):
        A(f"ds_read_b64 v[{o+2*w}:{o+2*w+1}], v{vOpR} offset:{OP+512*w}")
    A(f"s_waitcnt lgkmcnt({LG(4)})")
    A(f"v_max_u32 v{vT+1}, v{f}, v{f+1}")
    A(f"v_max3_u32 v{vT+1}, v{f+2}, v{f+3}, v{vT+1}")
    A(f"v_readfirstlane_b32 s28, v{vT}")
    A(f"v_readfirstlane_b32 s29, v{vT+1}")
    A(f"s_waitcnt lgkmcnt({LG(3)})")
    A(f"v_pk_mul_f32 v[{o}:{o+1}], v[{o}:{o+1}], v[{f}:{f+1}] op_sel_hi:[1,0]")
    if not tail2:
        A("s_cmp_lg_u32 s28, 3")
        A("s_cbranch_scc1 L_fin")
    else:
        A("s_cmp_eq_u32 s28, 3")
        A("s_cselect_b32 s29, s29, 0")
        A("s_cselect_b64 s[34:35], -1, 0")
    A(f"s_waitcnt lgkmcnt({LG(2)})")
    A(f"v_pk_fma_f32 v[{o}:{o+1}], v[{o+2}:{o+3}], v[{f}:{f+1}], v[{o}:{o+1}] op_sel:[0,1,0] op_sel_hi:[1,1,1]")
    A(f"s_waitcnt lgkmcnt({LG(1)})")
    A(f"v_pk_fma_f32 v[{o}:{o+1}], v[{o+4}:{o+5}], v[{f+2}:{f+3}], v[{o}:{o+1}] op_sel_hi:[1,0,1]")
    A("s_waitcnt lgkmcnt(0)")
    A(f"v_pk_fma_f32 v[{o}:{o+1}], v[{o+6}:{o+7}], v[{f+2}:{f+3}], v[{o}:{o+1}] op_sel:[0,1,0] op_sel_hi:[1,1,1]")
    A("s_cmp_lt_i32 s29, 0")
    A("s_cbranch_scc1 L_slow")
    A(f"v_min_u32 v{o}, -2, v{o}")
    A(f"v_min_u32 v{o+1}, -2, v{o+1}")
    if tail2: A("s_mov_b64 exec, s[34:35]")
    A(f"global_store_dwordx2 v{vSl}, v[{o}:{o+1}], s[18:19]")
    if stamp:
        if tail2:
            A("s_cbranch_execz L_fin")
        STAMP(6); A("s_branch L_fin")
    else:
        A("s_endpgm")
    A.label("L_slow")
    GUARD()
    A("s_cmp_eq_u32 s29, -1")
    A("s_cbranch_scc1 L_fac")
    A(f"v_sub_f32 v{o}, 0, v{o}")
    A(f"v_sub_f32 v{o+1}, 0, v{o+1}")
    A(f"v_min_u32 v{o}, -2, v{o}")
    A(f"v_min_u32 v{o+1}, -2, v{o+1}")
    A(f"v_add_u32 v{vSl}, {C_OFF}, v{vSl}")
    A(f"global_store_dwordx2 v{vSl}, v[{o}:{o+1}], s[18:19] sc1")
    A("s_and_b32 s29, s22, 7")
    A("s_lshl_b32 s29, 1, s29")
    A(f"v_mov_b32 v{vT}, s29")
    A("s_lshl_b32 s28, s25, 2")
    A(f"v_mov_b32 v{vT+1}, s28")
    A("s_waitcnt vmcnt(0)")
    A("s_mov_b64 exec, 1")
    A(f"global_atomic_or v{vT+1}, v{vT}, s[16:17] offset:128 sc1")
    STAMP(6)
    A("s_branch L_fin")
    h0 = 16
    if pg: A.raw(".p2align 12")
    A.label("L_H")
    A("s_load_dwordx4 s[12:15], s[0:1], 32")
    A("s_load_dwordx2 s[32:33], s[0:1], 48")
    A("s_load_dwordx4 s[16:19], s[0:1], 56")
    A("s_getreg_b32 s37, hwreg(HW_REG_XCC_ID)")
    A("s_and_b32 s37, s37, 15")
    A("s_add_u32 s37, s37, 1")
    A("s_and_b32 s23, s22, 7                  ; split")
    A(f"v_mov_b32 v{vZero}, 0")
    A("s_lshl_b32 s28, s25, 2")
    A(f"v_mov_b32 v1, s28")
    A("s_lshl_b32 s27, s25, 13")
    A(f"v_lshlrev_b32 v2, 3, v{vLn}            ; lane*8")
    A("s_mov_b32 s31, 0x3e0293ee")
    A("s_lshl_b32 s28, s25, 8")
    A(f"v_lshl_add_u32 v4, v{vLn}, 2, s28")
    if hprio: A(f"s_setprio {hprio}")
    def warmers(tag):
        n = 0
        if vpre:
            A(f"v_and_b32 v12, 3, v0")
            A("s_lshl_b32 s28, s22, 17")
            A(f"v_lshl_add_u32 v12, v12, 15, s28")
            A(f"global_load_dword v13, v12, s[8:9] nt")
            n += 1
        if cpre:
            lab = f"L_pc{tag}"
            A("s_getpc_b64 s[34:35]")
            A.label(lab)
            A(f"s_sub_u32 s34, s34, {lab}-{NAME}_kernel")
            A("s_subb_u32 s35, s35, 0")
            A(f"v_lshlrev_b32 v12, 7, v{vLn}")
            A(f"v_min_u32 v12, L_end-{NAME}_kernel, v12")
            A("v_add_co_u32 v12, vcc, s34, v12")
            A("v_mov_b32 v13, s35")
            A("v_addc_co_u32 v13, vcc, 0, v13, vcc")
            A(f"global_load_dword v14, v[12:13], off")
            n += 1
        return n
    A(f"s_cmp_lg_u32 s23, {comb}")
    A("s_cbranch_scc1 L_Hp")
    for i in range(4): A(f"v_mov_b32 v{h0+i}, -1")
    A(f"v_lshl_add_u32 v3, v{vLn}, 4, s27")
    A(f"v_add_u32 v5, 4096, v3")
    A("s_waitcnt lgkmcnt(0)")
    if not noclear:
        for i in range(4): A(f"global_store_dwordx4 v3, v[{h0}:{h0+3}], s[18:19] offset:{1024*i}")
        A(f"global_store_dwordx4 v5, v[{h0}:{h0+3}], s[18:19]")
    A(f"global_load_dword v{h0+4}, v4, s[4:5]")
    A(f"global_load_dword v{h0+5}, v4, s[10:11]")
    A(f"global_load_dword v{h0+6}, v4, s[12:13]")
    A(f"global_load_ushort v{h0+7}, v{vZero}, s[14:15]")
    nx = 0
    if warmout:
        A(f"global_load_dword v11, v4, s[32:33]")
        nx += 1
    nx += warmers("c")
    A(f"v_mov_b32 v6, s37")
    STAMP(8)
    if sat:
        A("s_barrier")
        A("s_lshl_b32 s28, s25, 2")
        A("s_mov_b32 s29, s37")
        A(f"s_waitcnt vmcnt({4+nx})")
        STAMP(9)
        A("s_atomic_add s29, s[16:17], s28 glc")
        if stamp: A("s_waitcnt lgkmcnt(0)")
        STAMP(1)
        if kvbar: A("s_barrier")
        A(f"s_waitcnt vmcnt({nx}) lgkmcnt(0)")
    else:
        A(f"s_waitcnt vmcnt({4+nx})")
        STAMP(9)
        A("s_mov_b64 exec, 1")
        A(f"global_store_dword v1, v6, s[16:17]{annmod}")
        A("s_mov_b64 exec, -1")
        A("s_barrier")
        STAMP(1)
        if kvbar: A("s_barrier")
        A(f"s_waitcnt vmcnt({1+nx})")
    tS, tV = h0 + 8, h0 + 10
    A(f"v_dot2_f32_bf16 v{tS}, v{h0+4}, v{h0+5}, 0")
    A(f"v_lshlrev_b32 v{h0+7}, 16, v{h0+7}")
    A(f"v_sub_f32 v{h0+7}, 1.0, v{h0+7}")
    A(f"v_mul_f32 v{h0+7}, 0xceabfb8f, v{h0+7}    ; -1e9*log2(e)")
    def wsum(r, t):
        for sh in (8, 4, 2, 1):
            A(f"v_add_f32_dpp v{r}, v{r}, v{r} row_ror:{sh} row_mask:0xf bank_mask:0xf")
        A(f"v_mov_b32 v{t}, v{r}")
        A(f"v_permlane16_swap_b32 v{t}, v{r}")
        A(f"v_add_f32 v{r}, v{r}, v{t}")
        A(f"v_mov_b32 v{t}, v{r}")
        A(f"v_permlane32_swap_b32 v{t}, v{r}")
        A(f"v_add_f32 v{r}, v{r}, v{t}")
    wsum(tS, h0)
    A(f"v_readfirstlane_b32 s28, v{tS}")
    A(f"v_lshlrev_b32 v{tV}, 16, v{h0+6}")
    A(f"v_and_b32 v{tV+1}, 0xffff0000, v{h0+6}")
    A(f"v_mov_b32 v{tS}, s28")
    A(f"v_fma_f32 v{tS}, v{tS}, s31, v{h0+7}")
    R0, R1 = 72, 88
    aO = 48
    def comb_setup():
        A(f"v_and_b32 v8, 7, v0")
        A("s_add_u32 s28, s27, 4096")
        A(f"v_lshl_add_u32 v5, v8, 3, s28")
        A("v_mov_b32 v10, v5")
        A("s_add_u32 s28, s27, 2048")
        A(f"v_add_u32 v3, s28, v2")
        A("s_mov_b32 s38, 0")
    if iwarm:
        comb_setup()
        for j in range(8): A(f"v_mov_b32 v{aO+j}, v3")
        A("s_mov_b64 s[34:35], 0")
        A("s_mov_b32 s39, 2")
        A("s_mov_b64 exec, 0")
        A("s_branch L_ml")
    else:
        A("s_branch L_Hs")
    A.label("L_Hp")
    A("s_waitcnt lgkmcnt(0)")
    warmers("p")
    A("s_barrier")
    if kvbar: A("s_barrier")
    A.label("L_Hs")
    GUARD()
    A(f"ds_read_b64 v[{h0}:{h0+1}], v{vZero} offset:{C_ML}")
    A("s_waitcnt lgkmcnt(0)")
    A(f"v_readfirstlane_b32 s29, v{h0}")
    A("s_cmp_lt_u32 s29, 4")
    A("s_cbranch_scc1 L_Hs")
    A(f"v_readfirstlane_b32 s28, v{h0+1}")
    A(f"s_cmp_eq_u32 s28, {'s37' if not forceslow else '-1'}")
    A("s_cselect_b32 s36, 0, 0x80000000")
    STAMP(2)
    rc = h0 + 12
    ff = h0 + 20
    ml = h0 + 24
    for w in range(4):
        A(f"ds_read_b64 v[{rc+2*w}:{rc+2*w+1}], v2 offset:{REC+512*w}")
    A("s_lshl_b32 s28, s23, 3")
    A("s_add_u32 s28, s28, s27")
    A("s_add_u32 s28, s28, 4096")
    A("s_lshr_b32 s29, s36, 11")
    A("s_add_u32 s28, s28, s29")
    A("v_mov_b32 v7, s28")
    A("s_waitcnt lgkmcnt(0)")
    A(f"v_max3_f32 v{ml}, v{rc}, v{rc+2}, v{rc+4}")
    A(f"v_max_f32 v{ml}, v{ml}, v{rc+6}")
    for w in range(4): A(f"v_sub_f32 v{ff+w}, v{rc+2*w}, v{ml}")
    for w in range(4): A(f"v_exp_f32 v{ff+w}, v{ff+w}")
    A(f"v_mul_f32 v{ml+1}, v{ff}, v{rc+1}")
    for w in range(1, 4): A(f"v_fmac_f32 v{ml+1}, v{ff+w}, v{rc+2*w+1}")
    for w in range(4): A(f"v_and_b32 v{ff+w}, 0x7fffffff, v{ff+w}")
    for w in range(4): A(f"v_min_u32 v{ff+w}, 0x7ffffffe, v{ff+w}")
    for w in range(4): A(f"v_or_b32 v{ff+w}, s36, v{ff+w}")
    A("s_cmp_lg_u32 s36, 0")
    A("s_cbranch_scc1 L_nofac")
    A("s_mov_b64 exec, 1")
    A(f"ds_write_b128 v{vZero}, v[{ff}:{ff+3}] offset:{FAC}")
    A("s_mov_b64 exec, -1")
    A.label("L_nofac")
    wsum(ml + 1, h0)
    A(f"v_min_u32 v{ml}, -2, v{ml}")
    A(f"v_min_u32 v{ml+1}, -2, v{ml+1}")
    A("s_mov_b64 exec, 1")
    A("s_cbranch_scc1 L_mlslow")
    A(f"global_store_dwordx2 v7, v[{ml}:{ml+1}], s[18:19]")
    A("s_branch L_mldone")
    A.label("L_mlslow")
    A(f"global_store_dwordx2 v7, v[{ml}:{ml+1}], s[18:19] sc1")
    A("s_waitcnt vmcnt(0)")
    A(f"ds_write_b128 v{vZero}, v[{ff}:{ff+3}] offset:{FAC}")
    A.label("L_mldone")
    A("s_mov_b64 exec, -1")
    STAMP(3)
    A(f"s_cmp_lg_u32 s23, {comb}")
    A("s_cbranch_scc1 L_fin")
    comb_setup()
    if gate:
        A.label("L_gate")
        GUARD()
        A(f"ds_read_b32 v{h0}, v{vZero} offset:12")
        A("s_waitcnt lgkmcnt(0)")
        A(f"v_readfirstlane_b32 s29, v{h0}")
        A(f"s_cmp_lt_u32 s29, {gate}")
        A("s_cbranch_scc1 L_gate")
    A.label("L_ml")
    GUARD()
    A(f"global_load_dwordx2 v[{ml}:{ml+1}], v10, s[18:19] sc1")
    if spec:
        for j in range(8):
            A(f"global_load_dwordx2 v[{R0+2*j}:{R0+2*j+1}], v3, s[18:19] offset:{512*j-2048}{pm}")
    A("s_add_u32 s38, s38, 1")
    A(f"s_waitcnt vmcnt({8 if spec else 0})")
    A(f"v_max_u32 v{h0}, v{ml}, v{ml+1}")
    A(f"v_cmp_eq_u32 vcc, -1, v{h0}")
    A("s_cbranch_vccz L_mlok")
    A(f"s_and_b32 s28, s38, {slowchk-1}")
    A("s_cbranch_scc1 L_ml")
    A(f"global_load_dword v{h0}, v1, s[16:17] offset:128 sc1")
    A("s_waitcnt vmcnt(0)")
    A(f"v_lshrrev_b32 v{h0}, v8, v{h0}")
    A(f"v_and_b32 v{h0}, 1, v{h0}")
    A(f"v_lshl_add_u32 v10, v{h0}, 20, v5")
    A("s_branch L_ml")
    A.label("L_mlok")
    STAMP(4)
    t0 = h0
    A(f"v_max_f32 v{t0}, v{ml}, v{tS}")
    A(f"v_sub_u32 v10, v10, v5")
    for sh in (4, 2, 1):
        A(f"v_max_f32_dpp v{t0}, v{t0}, v{t0} row_ror:{sh} row_mask:0xf bank_mask:0xf")
    A(f"v_sub_f32 v{ml}, v{ml}, v{t0}")
    A(f"v_sub_f32 v{tS}, v{tS}, v{t0}")
    A(f"v_exp_f32 v{ml}, v{ml}")
    A(f"v_exp_f32 v{tS}, v{tS}")
    A(f"v_mul_f32 v{ml+1}, v{ml}, v{ml+1}")
    for sh in (4, 2, 1):
        A(f"v_add_f32_dpp v{ml+1}, v{ml+1}, v{ml+1} row_ror:{sh} row_mask:0xf bank_mask:0xf")
    A(f"v_readfirstlane_b32 s28, v{ml+1}")
    for j in range(8): A(f"v_readlane_b32 s{48+j}, v10, {j}")
    A(f"v_add_f32 v{ml+1}, s28, v{tS}")
    A(f"v_rcp_f32 v{ml+1}, v{ml+1}")
    for j in range(8): A(f"v_add_u32 v{aO+j}, s{48+j}, v3")
    A(f"v_mul_f32 v{ml}, v{ml}, v{ml+1}")
    A(f"v_mul_f32 v{tS}, v{tS}, v{ml+1}")
    for j in range(8): A(f"v_readlane_b32 s{40+j}, v{ml}, {j}")
    A(f"v_mul_f32 v{tV}, v{tV}, v{tS}")
    A(f"v_mul_f32 v{tV+1}, v{tV+1}, v{tS}")
    STAMP(5)
    acc = h0 + 2
    def issue(R):
        for j in range(8):
            A(f"global_load_dwordx2 v[{R+2*j}:{R+2*j+1}], v{aO+j}, s[18:19] offset:{512*j-2048} sc1")
    def check(R):
        for j in range(8):
            src2 = f"v[{tV}:{tV+1}]" if j == 0 else f"v[{acc}:{acc+1}]"
            sp = 40 + (j & ~1)
            sel = "op_sel_hi:[0,1,1]" if j % 2 == 0 else "op_sel:[1,0,0] op_sel_hi:[1,1,1]"
            A(f"v_pk_fma_f32 v[{acc}:{acc+1}], s[{sp}:{sp+1}], v[{R+2*j}:{R+2*j+1}], {src2} {sel}")
            if j == 0: A(f"v_max_u32 v{t0}, v{R}, v{R+1}")
            else: A(f"v_max3_u32 v{t0}, v{R+2*j}, v{R+2*j+1}, v{t0}")
        A(f"v_cmp_eq_u32 vcc, -1, v{t0}")
        A(f"v_cvt_pk_bf16_f32 v{t0+1}, v{acc}, v{acc+1}")
        A("s_cmp_eq_u64 vcc, 0")
        A("s_cselect_b64 exec, s[34:35], 0" if iwarm else "s_cselect_b64 exec, -1, 0")
        A(f"global_store_dword v4, v{t0+1}, s[32:33]{outmod}")
        A("s_cbranch_scc1 L_done")
        A("s_mov_b64 exec, -1")
    if not spec: issue(R0)
    A.label("L_poll")
    GUARD()
    if stamp: A("s_add_u32 s38, s38, 0x10000")
    issue(R1)
    A("s_waitcnt vmcnt(8)")
    check(R0)
    A.label("L_poll2")
    issue(R0)
    A("s_waitcnt vmcnt(8)")
    check(R1)
    A("s_branch L_poll")
    A.label("L_done")
    if iwarm:
        A("s_cbranch_execz L_warm")
    if stamp:
        STAMP(6)
        A("s_waitcnt vmcnt(0)")
        STAMP(7)
        A("s_mov_b32 s84, s38")
    else:
        A("s_endpgm")
    if iwarm:
        if stamp: A("s_branch L_fin")
        A.label("L_warm")
        A("s_sub_u32 s39, s39, 1")
        A("s_cmp_eq_u32 s39, 1")
        A("s_cbranch_scc1 L_poll2")
        A("s_mov_b64 s[34:35], -1")
        A("s_mov_b32 s38, 0")
        A("s_mov_b64 exec, -1")
        STAMP(11)
        A("s_branch L_Hs")
    A.label("L_fin")
    if stamp:
        A("s_waitcnt lgkmcnt(0)")
        A("s_mul_i32 s28, s2, 5"); A("s_add_u32 s28, s28, s26"); A("s_lshl_b32 s28, s28, 7"); A("s_add_u32 s28, s28, 0x8000000")
        A("s_mov_b64 exec, -1")
        A("v_mov_b32 v1, s28")
        for i in range(24): A(f"v_mov_b32 v{8+i}, s{64+i}")
        A("s_mov_b64 exec, 1")
        for i in range(6): A(f"global_store_dwordx4 v1, v[{8+4*i}:{11+4*i}], s[18:19] offset:{16*i}")
    A.label("L_end")
    A("s_endpgm")
    NV = max(NV, 104)
    A.raw('.section .rodata,"a"'); A.raw(".p2align 6"); A.raw(f".amdhsa_kernel {NAME}_kernel")
    A.raw(f"  .amdhsa_next_free_vgpr {NV}")
    A.raw(f"  .amdhsa_next_free_sgpr {96 if stamp else 64}")
    A.raw(f"  .amdhsa_accum_offset {(NV+3)//4*4}")
    A.raw("  .amdhsa_group_segment_fixed_size 0"); A.raw("  .amdhsa_kernarg_size 72"); A.raw("  .amdhsa_user_sgpr_count 2")
    A.raw("  .amdhsa_user_sgpr_kernarg_segment_ptr 1"); A.raw("  .amdhsa_system_sgpr_workgroup_id_x 1"); A.raw(".end_amdhsa_kernel")
    return A.text(), LDS_SZ

if __name__ == "__main__":
    ap = argparse.ArgumentParser()
    ap.add_argument("-o", default="cdna_kernels/%s.s" % NAME)
    ap.add_argument("-D", type=int, default=24)
    ap.add_argument("--nb", type=int, default=8)
    ap.add_argument("--map", default="zm")
    ap.add_argument("--stamp", action="store_true")
    ap.add_argument("--safe", action="store_true")
    ap.add_argument("--forceslow", action="store_true")
    ap.add_argument("--outmod", default="")
    ap.add_argument("--kvbar", action="store_true")
    ap.add_argument("--nospec", action="store_true")
    ap.add_argument("--comb", type=int, default=0)
    ap.add_argument("--prio", type=int, default=0)
    ap.add_argument("--pa", type=int, default=28)
    ap.add_argument("--annmod", default="")
    ap.add_argument("--nosat", action="store_true")
    ap.add_argument("--noclear", action="store_true")
    ap.add_argument("--gate", type=int, default=0)
    ap.add_argument("--slowchk", type=int, default=16)
    ap.add_argument("--qp", type=int, default=-1)
    for o in ("warmout", "vpre", "cpre", "iwarm", "tail2"): ap.add_argument("--" + o, action="store_true")
    ap.add_argument("--sw", type=int, default=0)
    ap.add_argument("--pg", type=int, default=0)
    ap.add_argument("--hprio", type=int, default=0)
    ap.add_argument("--tprio", type=int, default=0)
    a = ap.parse_args()
    t, l = gen(D=a.D, NB=a.nb, amap=a.map, stamp=a.stamp, safe=a.safe, forceslow=a.forceslow,
               outmod=(" " + a.outmod if a.outmod else ""), kvbar=a.kvbar, spec=not a.nospec, comb=a.comb, prio=a.prio, PA=a.pa, annmod=(' ' + a.annmod if a.annmod else ''), sat=not a.nosat, noclear=a.noclear, gate=a.gate, slowchk=a.slowchk,
               QP=a.qp, warmout=a.warmout, vpre=a.vpre, cpre=a.cpre, iwarm=a.iwarm, tail2=a.tail2, hprio=a.hprio, tprio=a.tprio, sw=a.sw, pg=a.pg)
    open(a.o, "w").write(t)
```

```python
import sys, argparse
from asmlib import Asm
NAME = "standalone__tree_speculative_verify_tree_attention_over_candidate_token_tree__decode"
HDR = open("cdna_kernels/%s.s.ref" % NAME).read().split("; Override")[0]

def gen(D=24, NB=8, NS=8, amap="zm", stamp=False, safe=False, forceslow=False, comb=0, PA=40, gate=4, slowchk=16,
        hprio=0, tprio=0, pg=1, pgh=0, eml=1, npoll=2, nocomb=0, own=0, gk=63):
    NS_W = 4
    NL = 32
    NSL = min(2 * NL, D + 2)
    A = Asm()
    def STAMP(i):
        if stamp: A(f"s_memrealtime s[{64+2*i}:{65+2*i}]")
    def GUARD():
        if safe:
            A("s_add_u32 s63, s63, 1"); A("s_cmp_gt_u32 s63, 0x40000"); A("s_cbranch_scc1 L_end")
    def LG(n): return 0 if stamp else n
    Q, KC, VC, KT, VT, MK, OUT, DBG, WS = (f"s[{i}:{i+1}]" for i in range(4, 22, 2))
    C_ML, C_O, C_G, FAC, REC, OP = 0, 8, 12, 16, 256, 256 + 2048
    LDS_SZ = OP + 2048
    C_OFF = 1 << 20
    vK = 1; vV = 5
    vLn = 9; vT = 10
    vB = 16
    vDt = 32
    vX = 40
    vMx = 42
    vM = 44
    vA = 48
    vO = 56
    vOne, vZero = 60, 61
    vRecA, vOpW, vOpR, vSl = 62, 63, 64, 65
    vAnn = 66
    vQ = 68
    vR = 72
    NV = vR + 4 * NSL
    h0 = 16
    A.raw(HDR.rstrip())
    A.raw(f"; @launch grid=(256,1,1) block=(320,1,1) lds={LDS_SZ}")
    A.raw('.amdgcn_target "amdgcn-amd-amdhsa--gfx950"'); A.raw(".text"); A.raw(f".globl {NAME}_kernel")
    if pg: A.raw(".p2align 12")
    A.raw(".p2align 8"); A.raw(f".type {NAME}_kernel,@function"); A.label(f"{NAME}_kernel")
    A("s_load_dwordx16 s[4:19], s[0:1], 0")
    A("s_load_dwordx2 s[20:21], s[0:1], 64    ; ws")
    STAMP(0)
    if safe: A("s_mov_b32 s63, 0")
    A(f"v_lshrrev_b32 v{vT}, 6, v0")
    A("s_cmp_ge_u32 s2, 256")
    A("s_cbranch_scc1 L_end1")
    A(f"v_readfirstlane_b32 s26, v{vT}         ; wave")
    A(f"v_and_b32 v{vLn}, 63, v0")
    if amap == "zm":
        A("s_and_b32 s22, s2, 7"); A("s_lshl_b32 s22, s22, 5"); A("s_lshr_b32 s23, s2, 3"); A("s_or_b32 s22, s22, s23")
    elif amap == "hm":
        A("s_mov_b32 s22, s2")
    A(f"v_bfe_i32 v{vT+1}, v0, 2, 1")
    A(f"v_lshlrev_b32 v{vT+2}, 2, v{vLn}")
    A(f"ds_write_b32 v{vT+2}, v{vT+1}")
    A("s_lshr_b32 s25, s22, 3                 ; head")
    A("s_and_b32 s23, s22, 7                  ; split")
    A("s_lshl_b32 s28, s25, 8")
    A("s_lshl_b32 s27, s25, 13")
    A(f"s_cmp_lg_u32 s26, {NS_W}")
    A("s_cbranch_scc1 L_S")
    if hprio: A(f"s_setprio {hprio}")
    A(f"v_mov_b32 v{vZero}, 0")
    A(f"v_add_u32 v4, s28, v{vT+2}")
    A(f"s_cmp_lg_u32 s23, {comb if nocomb < 2 else 9}")
    A("s_cbranch_scc1 L_Hb")
    for i in range(4): A(f"v_mov_b32 v{h0+i}, -1")
    A("s_add_u32 s29, s27, 2048")
    A(f"v_lshl_add_u32 v3, v{vLn}, 4, s29")
    A("s_waitcnt lgkmcnt(0)")
    for i in range(4): A(f"global_store_dwordx4 v3, v[{h0}:{h0+3}], {WS} offset:{1024*i-2048}")
    A("s_mov_b64 exec, 15")
    A(f"global_store_dwordx4 v3, v[{h0}:{h0+3}], {WS} offset:2048")
    A("s_mov_b64 exec, -1")
    A(f"global_load_dword v{h0+4}, v4, {Q}")
    A(f"global_load_dword v{h0+5}, v4, {KT}")
    A(f"global_load_dword v{h0+6}, v4, {VT}")
    A(f"global_load_ushort v{h0+7}, v{vZero}, {MK}")
    STAMP(8)
    A.label("L_Hb")
    A("s_waitcnt lgkmcnt(0)")
    A("s_barrier")
    A("s_branch L_H")
    A.label("L_end1")
    A("s_endpgm")
    A.label("L_S")
    A("s_lshl_b32 s24, s22, 17")
    A("s_mul_i32 s29, s26, 0xa000")
    A("s_add_u32 s24, s24, s29")
    A("s_add_u32 s24, s24, 4096")
    A(f"v_and_b32 v{vT}, 3, v0")
    A(f"v_lshl_add_u32 v{vK}, v{vT}, 4, s24")
    A(f"v_bfe_u32 v{vT+1}, v0, 2, 2")
    A(f"v_lshl_add_u32 v{vK}, v{vT+1}, 8, v{vK}")
    A(f"v_bfe_u32 v{vT+1}, v0, 4, 2")
    A(f"v_lshl_add_u32 v{vK}, v{vT+1}, 6, v{vK}")
    A(f"v_lshrrev_b32 v{vT+2}, 2, v{vLn}")
    A(f"v_lshl_add_u32 v{vT+2}, v{vT+2}, 4, s28")
    for i in range(1, 4): A(f"v_xor_b32 v{vK+i}, {8192*i}, v{vK}")
    A("s_waitcnt lgkmcnt(0)")
    STAMP(1)
    def slot(k): return vR + 4 * (k % NSL)
    def load(k):
        r = slot(k)
        if k < NL: base, va, i = KC, vK, k
        else: base, va, i = VC, vV, k - NL
        A(f"global_load_dwordx4 v[{r}:{r+3}], v{va + i//8}, {base} offset:{(i%8)*1024-4096} nt")
    pend = []
    def qk(k):
        t, c = k // 4, k % 4
        d = vDt + 4 * (t % 2)
        cc = "0" if c == 0 else f"v[{d}:{d+3}]"
        A(f"v_mfma_f32_16x16x32_bf16 v[{d}:{d+3}], v[{slot(k)}:{slot(k)+3}], v[{vB+4*c}:{vB+4*c+3}], {cc}")
    def red(t, i):
        h, u = t // 4, t % 4
        d = vDt + 4 * (t % 2)
        b = [x for x in range(4) if x != u][i]
        s1 = f"v{d+u}" if i == 0 else f"v{vX+h}"
        A(f"v_add_f32_dpp v{vX+h}, v{d+b}, {s1} row_ror:{(4*(u-b))%16} row_mask:0xf bank_mask:{hex(1<<u)}")
    def abuild(j):
        a = vA + 4 * (j % 2)
        for r in range(4):
            A(f"v_and_b32_dpp v{a+r}, v{vX + j//16}, v{vM+r} row_newbcast:{j%16} row_mask:0xf bank_mask:0xf")
    def pv(j):
        a = vA + 4 * (j % 2); r = slot(NL + j)
        cc = "0" if j == 0 else f"v[{vO}:{vO+3}]"
        A(f"v_mfma_f32_16x16x32_bf16 v[{vO}:{vO+3}], v[{a}:{a+3}], v[{r}:{r+3}], {cc}")
    def setup_after_first():
        A(f"v_lshl_add_u32 v{vV}, v{vLn}, 4, s24")
        for i in range(1, 4): A(f"v_xor_b32 v{vV+i}, {8192*i}, v{vV}")
        A(f"v_and_b32 v{vT+1}, 15, v0              ; n")
        A(f"v_and_b32 v{vT+3}, 1, v0")
        A(f"v_lshlrev_b32 v{vT+3}, 4, v{vT+3}")
        A(f"v_mov_b32 v{vT+4}, 0xffff")
        A(f"v_lshlrev_b32 v{vT+3}, v{vT+3}, v{vT+4}    ; 0xffff << 16*(n&1)")
        A(f"v_lshrrev_b32 v{vT+4}, 1, v{vT+1}")
        for r in range(4):
            A(f"v_cmp_eq_u32 s[{40+2*r}:{41+2*r}], {r}, v{vT+4}")
        for c in range(4):
            A(f"v_cmp_eq_u32 s[{48+2*c}:{49+2*c}], {c}, v{vT}")
        for r in range(4):
            A(f"v_cndmask_b32 v{vM+r}, 0, v{vT+3}, s[{40+2*r}:{41+2*r}]")
        A(f"v_mov_b32 v{vOne}, 1")
        A(f"v_mov_b32 v{vZero}, 0")
        A("s_lshl_b32 s28, s26, 9")
        A(f"v_lshlrev_b32 v{vOpR}, 3, v{vLn}")
        A(f"v_add_u32 v{vRecA}, s28, v{vOpR}")
        A(f"v_bfe_u32 v{vT+3}, v0, 4, 1")
        A(f"v_lshlrev_b32 v{vT+3}, 4, v{vT+3}")
        A(f"v_lshl_add_u32 v{vT+3}, v{vT+1}, 5, v{vT+3}")
        A(f"v_add_u32 v{vOpW}, s28, v{vT+3}")
        A("s_lshl_b32 s30, s23, 9")
        A("s_add_u32 s28, s27, s30")
        A(f"v_add_u32 v{vSl}, s28, v{vOpR}")
        A("s_mov_b32 s31, 0x3e0293ee              ; log2(e)/sqrt(128)")
        A("s_lshl_b32 s28, s25, 2")
        A(f"v_mov_b32 v{vAnn}, s28")
    def bmask():
        for c in range(4):
            for r in range(4):
                A(f"v_cndmask_b32 v{vB+4*c+r}, 0, v{vQ+r}, s[{48+2*c}:{49+2*c}]")
    def softmax():
        m = vMx
        A(f"v_max_f32 v{m}, v{vX}, v{vX+1}")
        for sh in (8, 4, 2, 1):
            A(f"v_max_f32_dpp v{m}, v{m}, v{m} row_ror:{sh} row_mask:0xf bank_mask:0xf")
        A(f"v_mov_b32 v{vT}, v{m}")
        A(f"v_permlane16_swap_b32 v{vT}, v{m}")
        A(f"v_max_f32 v{m}, v{m}, v{vT}")
        A(f"v_mov_b32 v{vT}, v{m}")
        A(f"v_permlane32_swap_b32 v{vT}, v{m}")
        A(f"v_max_f32 v{m}, v{m}, v{vT}")
        A(f"v_mul_f32 v{m}, s31, v{m}")
        for h in range(2): A(f"v_fma_f32 v{vX+h}, v{vX+h}, s31, -v{m}")
        for h in range(2): A(f"v_exp_f32 v{vX+h}, v{vX+h}")
        A(f"v_add_f32 v{m+1}, v{vX}, v{vX+1}")
        for h in range(2): A(f"v_cvt_pk_bf16_f32 v{vX+h}, v{vX+h}, v{vX+h}")
        A(f"ds_write_b64 v{vRecA}, v[{m}:{m+1}] offset:{REC}")
        STAMP(4)
    def publish():
        A("s_mov_b64 exec, 1")
        A(f"ds_or_b32 v{vZero}, v{vAnn} offset:{C_ML+4}")
        A(f"ds_add_u32 v{vZero}, v{vOne} offset:{C_ML}")
        A("s_mov_b64 exec, -1")
    A(f"global_load_dwordx4 v[{vQ}:{vQ+3}], v{vT+2}, {Q}")
    def consume(k, outstanding_after):
        if k < NL:
            if k == 0:
                A(f"s_waitcnt vmcnt({min(63, outstanding_after + 1)})   ; q")
                bmask()
            A(f"s_waitcnt vmcnt({outstanding_after})")
            if k == 0: STAMP(2)
            qk(k)
            if pend: pend.pop(0)()
            if k % 4 == 3:
                t = k // 4
                pend.append(lambda: None)
                for i in range(3): pend.append(lambda t=t, i=i: red(t, i))
            if k == NL - 1:
                while pend: pend.pop(0)()
                softmax()
                if PA < NL - 1: publish()
                abuild(0)
        else:
            j = k - NL
            if j + 1 < NL: abuild(j + 1)
            A(f"s_waitcnt vmcnt({outstanding_after})")
            pv(j)
            if k == PA + 1: publish()
    assert NS <= PA < 2 * NL - 2 and NS <= D
    def after(k, last):
        return last - k + (1 if k <= PA <= last else 0)
    for k in range(2 * NL):
        load(k)
        if k == PA:
            A(f"global_load_dword v{vAnn}, v{vAnn}, {DBG} sc1")
        if k == NB - 1:
            A("s_barrier")
        if k == NS - 1:
            setup_after_first()
        if k == 2 * NL - 1: STAMP(3)
        if gate and k == gk:
            A("s_mov_b64 exec, 1")
            A(f"ds_add_u32 v{vZero}, v{vOne} offset:{C_G}")
            A("s_mov_b64 exec, -1")
        if k - D >= 0: consume(k - D, after(k - D, k))
    for k in range(max(0, 2 * NL - D), 2 * NL):
        consume(k, after(k, 2 * NL - 1))
    STAMP(5)
    if tprio: A(f"s_setprio {tprio}")
    f = vB; o = vB + 4
    A("s_mov_b32 exec_hi, 0")
    A(f"ds_write_b128 v{vOpW}, v[{vO}:{vO+3}] offset:{OP}")
    A("s_mov_b32 exec_lo, 1")
    A(f"ds_add_rtn_u32 v{vT}, v{vZero}, v{vOne} offset:{C_O}")
    A("s_mov_b64 exec, -1")
    A.label("L_fac")
    A(f"ds_read_b128 v[{f}:{f+3}], v{vZero} offset:{FAC}")
    for w in range(4):
        A(f"ds_read_b64 v[{o+2*w}:{o+2*w+1}], v{vOpR} offset:{OP+512*w}")
    A(f"s_waitcnt lgkmcnt({LG(4)})")
    A(f"v_max_u32 v{vT+1}, v{f}, v{f+1}")
    A(f"v_max3_u32 v{vT+1}, v{f+2}, v{f+3}, v{vT+1}")
    A(f"v_readfirstlane_b32 s28, v{vT}")
    A(f"v_readfirstlane_b32 s29, v{vT+1}")
    A(f"s_waitcnt lgkmcnt({LG(3)})")
    A(f"v_pk_mul_f32 v[{o}:{o+1}], v[{o}:{o+1}], v[{f}:{f+1}] op_sel_hi:[1,0]")
    A("s_cmp_eq_u32 s28, 3")
    A("s_cselect_b32 s29, s29, 0")
    A("s_cselect_b64 s[34:35], -1, 0")
    A(f"s_waitcnt lgkmcnt({LG(2)})")
    A(f"v_pk_fma_f32 v[{o}:{o+1}], v[{o+2}:{o+3}], v[{f}:{f+1}], v[{o}:{o+1}] op_sel:[0,1,0] op_sel_hi:[1,1,1]")
    A(f"s_waitcnt lgkmcnt({LG(1)})")
    A(f"v_pk_fma_f32 v[{o}:{o+1}], v[{o+4}:{o+5}], v[{f+2}:{f+3}], v[{o}:{o+1}] op_sel_hi:[1,0,1]")
    A("s_waitcnt lgkmcnt(0)")
    A(f"v_pk_fma_f32 v[{o}:{o+1}], v[{o+6}:{o+7}], v[{f+2}:{f+3}], v[{o}:{o+1}] op_sel:[0,1,0] op_sel_hi:[1,1,1]")
    A("s_cmp_lt_i32 s29, 0")
    A("s_cbranch_scc1 L_slow")
    A(f"v_min_u32 v{o}, -2, v{o}")
    A(f"v_min_u32 v{o+1}, -2, v{o+1}")
    A("s_mov_b64 exec, s[34:35]")
    A(f"global_store_dwordx2 v{vSl}, v[{o}:{o+1}], {WS}")
    if stamp:
        A("s_cbranch_execz L_fin")
        STAMP(6); A("s_branch L_fin")
    else:
        A("s_endpgm")
    A.label("L_slow")
    GUARD()
    A("s_cmp_eq_u32 s29, -1")
    A("s_cbranch_scc1 L_fac")
    A(f"v_sub_f32 v{o}, 0, v{o}")
    A(f"v_sub_f32 v{o+1}, 0, v{o+1}")
    A(f"v_min_u32 v{o}, -2, v{o}")
    A(f"v_min_u32 v{o+1}, -2, v{o+1}")
    A(f"v_add_u32 v{vSl}, {C_OFF}, v{vSl}")
    A(f"global_store_dwordx2 v{vSl}, v[{o}:{o+1}], {WS} sc1")
    A("s_lshl_b32 s29, 1, s23")
    A(f"v_mov_b32 v{vT}, s29")
    A("s_lshl_b32 s28, s25, 2")
    A(f"v_mov_b32 v{vT+1}, s28")
    A("s_waitcnt vmcnt(0)")
    A("s_mov_b64 exec, 1")
    A(f"global_atomic_or v{vT+1}, v{vT}, {DBG} offset:128 sc1")
    STAMP(6)
    A("s_branch L_fin")
    if pgh: A.raw(f".p2align {pgh}")
    A.label("L_H")
    A("s_getreg_b32 s37, hwreg(HW_REG_XCC_ID)")
    A("s_and_b32 s37, s37, 15")
    A("s_add_u32 s37, s37, 1")
    A(f"v_lshlrev_b32 v2, 3, v{vLn}            ; lane*8")
    A(f"v_and_b32 v8, 7, v0")
    A("s_add_u32 s28, s27, 4096")
    A(f"v_lshl_add_u32 v5, v8, 3, s28")
    A("v_mov_b32 v10, v5")
    A("s_add_u32 s28, s27, 2048")
    A(f"v_add_u32 v3, s28, v2")
    A("s_mov_b32 s38, 0")
    A("s_lshl_b32 s28, s25, 2")
    A(f"v_mov_b32 v1, s28")
    A(f"s_cmp_lg_u32 s23, {comb if nocomb < 2 else 9}")
    A("s_cbranch_scc1 L_Hs")
    A("s_mov_b32 s29, s37")
    A("s_waitcnt vmcnt(4)")
    STAMP(9)
    A(f"s_atomic_add s29, {DBG}, s28 glc")
    if stamp: A("s_waitcnt lgkmcnt(0)")
    STAMP(1)
    A("s_mov_b32 s31, 0x3e0293ee")
    A("s_waitcnt vmcnt(0)")
    tS, tV = h0 + 8, h0 + 10
    A(f"v_dot2_f32_bf16 v{tS}, v{h0+4}, v{h0+5}, 0")
    A(f"v_lshlrev_b32 v{h0+7}, 16, v{h0+7}")
    A(f"v_sub_f32 v{h0+7}, 1.0, v{h0+7}")
    A(f"v_mul_f32 v{h0+7}, 0xceabfb8f, v{h0+7}    ; -1e9*log2(e)")
    def wsum(r, t):
        for sh in (8, 4, 2, 1):
            A(f"v_add_f32_dpp v{r}, v{r}, v{r} row_ror:{sh} row_mask:0xf bank_mask:0xf")
        A(f"v_mov_b32 v{t}, v{r}")
        A(f"v_permlane16_swap_b32 v{t}, v{r}")
        A(f"v_add_f32 v{r}, v{r}, v{t}")
        A(f"v_mov_b32 v{t}, v{r}")
        A(f"v_permlane32_swap_b32 v{t}, v{r}")
        A(f"v_add_f32 v{r}, v{r}, v{t}")
    wsum(tS, h0)
    A(f"v_readfirstlane_b32 s28, v{tS}")
    A(f"v_lshlrev_b32 v{tV}, 16, v{h0+6}")
    A(f"v_and_b32 v{tV+1}, 0xffff0000, v{h0+6}")
    A(f"v_mov_b32 v{tS}, s28")
    A(f"v_fma_f32 v{tS}, v{tS}, s31, v{h0+7}")
    RB = [72 + 16 * i for i in range(npoll)]
    aO = 48
    A.label("L_Hs")
    GUARD()
    A(f"ds_read_b64 v[{h0}:{h0+1}], v{vZero} offset:{C_ML}")
    A("s_waitcnt lgkmcnt(0)")
    A(f"v_readfirstlane_b32 s29, v{h0}")
    A("s_cmp_lt_u32 s29, 4")
    A("s_cbranch_scc1 L_Hs")
    A(f"v_readfirstlane_b32 s28, v{h0+1}")
    A(f"s_cmp_eq_u32 s28, {'s28' if nocomb == 2 else 's37' if not forceslow else '-1'}")
    A("s_cselect_b32 s36, 0, 0x80000000")
    STAMP(2)
    rc = h0 + 12
    ff = h0 + 20
    ml = h0 + 24
    for w in range(4):
        A(f"ds_read_b64 v[{rc+2*w}:{rc+2*w+1}], v2 offset:{REC+512*w}")
    A("s_lshl_b32 s28, s23, 3")
    A("s_add_u32 s28, s28, s27")
    A("s_add_u32 s28, s28, 4096")
    A("s_lshr_b32 s29, s36, 11")
    A("s_add_u32 s28, s28, s29")
    A("v_mov_b32 v7, s28")
    A("s_waitcnt lgkmcnt(0)")
    A(f"v_max3_f32 v{ml}, v{rc}, v{rc+2}, v{rc+4}")
    A(f"v_max_f32 v{ml}, v{ml}, v{rc+6}")
    for w in range(4): A(f"v_sub_f32 v{ff+w}, v{rc+2*w}, v{ml}")
    for w in range(4): A(f"v_exp_f32 v{ff+w}, v{ff+w}")
    A(f"v_mul_f32 v{ml+1}, v{ff}, v{rc+1}")
    for w in range(1, 4): A(f"v_fmac_f32 v{ml+1}, v{ff+w}, v{rc+2*w+1}")
    for w in range(4): A(f"v_and_b32 v{ff+w}, 0x7fffffff, v{ff+w}")
    for w in range(4): A(f"v_min_u32 v{ff+w}, 0x7ffffffe, v{ff+w}")
    for w in range(4): A(f"v_or_b32 v{ff+w}, s36, v{ff+w}")
    A("s_cmp_lg_u32 s36, 0")
    A("s_cbranch_scc1 L_nofac")
    A("s_mov_b64 exec, 1")
    A(f"ds_write_b128 v{vZero}, v[{ff}:{ff+3}] offset:{FAC}")
    A("s_mov_b64 exec, -1")
    A.label("L_nofac")
    wsum(ml + 1, h0)
    A(f"v_min_u32 v{ml}, -2, v{ml}")
    A(f"v_min_u32 v{ml+1}, -2, v{ml+1}")
    A("s_mov_b64 exec, 1")
    A("s_cbranch_scc1 L_mlslow")
    A(f"global_store_dwordx2 v7, v[{ml}:{ml+1}], {WS}")
    A("s_branch L_mldone")
    A.label("L_mlslow")
    A(f"global_store_dwordx2 v7, v[{ml}:{ml+1}], {WS} sc1")
    A("s_waitcnt vmcnt(0)")
    A(f"ds_write_b128 v{vZero}, v[{ff}:{ff+3}] offset:{FAC}")
    A.label("L_mldone")
    A("s_mov_b64 exec, -1")
    STAMP(3)
    A(f"s_cmp_lg_u32 s23, {comb if not nocomb else 9}")
    A("s_cbranch_scc1 L_fin")
    def GATE():
        A.label("L_gate")
        GUARD()
        A(f"ds_read_b32 v{h0}, v{vZero} offset:{C_G}")
        A("s_waitcnt lgkmcnt(0)")
        A(f"v_readfirstlane_b32 s29, v{h0}")
        A(f"s_cmp_lt_u32 s29, {gate}")
        A("s_cbranch_scc1 L_gate")
        STAMP(11)
    if gate and not eml: GATE()
    A.label("L_ml")
    GUARD()
    A(f"global_load_dwordx2 v[{ml}:{ml+1}], v10, {WS} sc1")
    if not eml:
        for j in range(8):
            A(f"global_load_dwordx2 v[{RB[0]+2*j}:{RB[0]+2*j+1}], v3, {WS} offset:{512*j-2048} sc1")
    A("s_add_u32 s38, s38, 1")
    A(f"s_waitcnt vmcnt({0 if eml else 8})")
    A(f"v_max_u32 v{h0}, v{ml}, v{ml+1}")
    A(f"v_cmp_eq_u32 vcc, -1, v{h0}")
    A("s_cbranch_vccz L_mlok")
    A(f"s_and_b32 s28, s38, {slowchk-1}")
    A("s_cbranch_scc1 L_ml")
    A(f"global_load_dword v{h0}, v1, {DBG} offset:128 sc1")
    A("s_waitcnt vmcnt(0)")
    A(f"v_lshrrev_b32 v{h0}, v8, v{h0}")
    A(f"v_and_b32 v{h0}, 1, v{h0}")
    A(f"v_lshl_add_u32 v10, v{h0}, 20, v5")
    A("s_branch L_ml")
    A.label("L_mlok")
    STAMP(4)
    t0 = h0
    A(f"v_max_f32 v{t0}, v{ml}, v{tS}")
    A(f"v_sub_u32 v10, v10, v5")
    for sh in (4, 2, 1):
        A(f"v_max_f32_dpp v{t0}, v{t0}, v{t0} row_ror:{sh} row_mask:0xf bank_mask:0xf")
    A(f"v_sub_f32 v{ml}, v{ml}, v{t0}")
    A(f"v_sub_f32 v{tS}, v{tS}, v{t0}")
    A(f"v_exp_f32 v{ml}, v{ml}")
    A(f"v_exp_f32 v{tS}, v{tS}")
    A(f"v_mul_f32 v{ml+1}, v{ml}, v{ml+1}")
    for sh in (4, 2, 1):
        A(f"v_add_f32_dpp v{ml+1}, v{ml+1}, v{ml+1} row_ror:{sh} row_mask:0xf bank_mask:0xf")
    A(f"v_readfirstlane_b32 s28, v{ml+1}")
    for j in range(8): A(f"v_readlane_b32 s{48+j}, v10, {j}")
    A(f"v_add_f32 v{ml+1}, s28, v{tS}")
    A(f"v_rcp_f32 v{ml+1}, v{ml+1}")
    for j in range(8): A(f"v_add_u32 v{aO+j}, s{48+j}, v3")
    A(f"v_mul_f32 v{ml}, v{ml}, v{ml+1}")
    A(f"v_mul_f32 v{tS}, v{tS}, v{ml+1}")
    for j in range(8): A(f"v_readlane_b32 s{40+j}, v{ml}, {j}")
    A(f"v_mul_f32 v{tV}, v{tV}, v{tS}")
    A(f"v_mul_f32 v{tV+1}, v{tV+1}, v{tS}")
    STAMP(5)
    if gate and eml: GATE()
    acc = h0 + 2
    def issue(R):
        for j in range(8):
            A(f"global_load_dwordx2 v[{R+2*j}:{R+2*j+1}], v{aO+j}, {WS} offset:{512*j-2048} sc1")
    def check(R):
        for j in range(8):
            src2 = f"v[{tV}:{tV+1}]" if j == 0 else f"v[{acc}:{acc+1}]"
            sp = 40 + (j & ~1)
            sel = "op_sel_hi:[0,1,1]" if j % 2 == 0 else "op_sel:[1,0,0] op_sel_hi:[1,1,1]"
            A(f"v_pk_fma_f32 v[{acc}:{acc+1}], s[{sp}:{sp+1}], v[{R+2*j}:{R+2*j+1}], {src2} {sel}")
            if j == 0: A(f"v_max_u32 v{t0}, v{R}, v{R+1}")
            else: A(f"v_max3_u32 v{t0}, v{R+2*j}, v{R+2*j+1}, v{t0}")
        A(f"v_cmp_eq_u32 vcc, -1, v{t0}")
        A(f"v_cvt_pk_bf16_f32 v{t0+1}, v{acc}, v{acc+1}")
        A("s_cmp_eq_u64 vcc, 0")
        A("s_cselect_b64 exec, -1, 0")
        A(f"global_store_dword v4, v{t0+1}, {OUT}")
        A("s_cbranch_scc1 L_done")
        A("s_mov_b64 exec, -1")
    for i in range(0 if eml else 1, npoll - 1): issue(RB[i])
    A.label("L_poll")
    GUARD()
    if stamp: A("s_add_u32 s38, s38, 0x10000")
    for i in range(npoll):
        issue(RB[(i + npoll - 1) % npoll])
        A(f"s_waitcnt vmcnt({8*(npoll-1)})")
        check(RB[i])
    A("s_branch L_poll")
    A.label("L_done")
    if stamp:
        STAMP(6)
        A("s_waitcnt vmcnt(0)")
        STAMP(7)
        A("s_mov_b32 s84, s38")
    else:
        A("s_endpgm")
    A.label("L_fin")
    if stamp:
        A("s_waitcnt lgkmcnt(0)")
        A("s_mul_i32 s28, s2, 5"); A("s_add_u32 s28, s28, s26"); A("s_lshl_b32 s28, s28, 7"); A("s_add_u32 s28, s28, 0x8000000")
        A("s_mov_b64 exec, -1")
        A("v_mov_b32 v1, s28")
        for i in range(24): A(f"v_mov_b32 v{8+i}, s{64+i}")
        A("s_mov_b64 exec, 1")
        for i in range(6): A(f"global_store_dwordx4 v1, v[{8+4*i}:{11+4*i}], {WS} offset:{16*i}")
    A.label("L_end")
    A("s_endpgm")
    NV = max(NV, 72 + 16 * npoll)
    A.raw('.section .rodata,"a"'); A.raw(".p2align 6"); A.raw(f".amdhsa_kernel {NAME}_kernel")
    A.raw(f"  .amdhsa_next_free_vgpr {NV}")
    A.raw(f"  .amdhsa_next_free_sgpr {96 if stamp else 64}")
    A.raw(f"  .amdhsa_accum_offset {(NV+3)//4*4}")
    A.raw("  .amdhsa_group_segment_fixed_size 0"); A.raw("  .amdhsa_kernarg_size 72"); A.raw("  .amdhsa_user_sgpr_count 2")
    A.raw("  .amdhsa_user_sgpr_kernarg_segment_ptr 1"); A.raw("  .amdhsa_system_sgpr_workgroup_id_x 1"); A.raw(".end_amdhsa_kernel")
    return A.text(), LDS_SZ

if __name__ == "__main__":
    import inspect
    ap = argparse.ArgumentParser()
    ap.add_argument("-o", required=True)
    sig = inspect.signature(gen)
    for n, p in sig.parameters.items():
        if isinstance(p.default, bool): ap.add_argument("--" + n, action="store_true")
        else: ap.add_argument("--" + n, type=type(p.default), default=p.default)
    a = vars(ap.parse_args()); o = a.pop("o")
    t, l = gen(**a)
    open(o, "w").write(t)
```
